```python
import torch

def _softmax(x, axis=-1):
    return torch.softmax(x, dim=axis)
def _gelu(x):
    return torch.nn.functional.gelu(x, approximate="tanh")
def _silu(x):
    return torch.nn.functional.silu(x)
def _sigmoid(x):
    return torch.sigmoid(x)
def _layernorm(x, axis=-1, eps=1e-5):
    m = x.mean(dim=axis, keepdim=True)
    v = x.var(dim=axis, keepdim=True, unbiased=False)
    return (x - m) / torch.sqrt(v + eps)
def _scatter_add(tgt, idx, src, axis=0):
    return tgt.clone().index_add_(axis, idx, src)
def _segment_sum(src, seg, n):
    out = torch.zeros((n,) + src.shape[1:], dtype=src.dtype)
    return out.index_add_(0, seg, src)
def _pad(x, pw):
    flat = tuple(v for pair in reversed(pw) for v in pair)
    return torch.nn.functional.pad(x, flat)

kernel_name = 'parallel_sum__linear_attn_block__geglu_ffn__prompt'

def setup_inputs():

    _w = (lambda a: (lambda t: t.to(torch.bfloat16) if t.is_floating_point() else t)(torch.as_tensor(a)))
    def _A_setup():
        B, S, D = 1, 2048, 576
        return {
            "x": _w((lambda *s: torch.randn(*s, dtype=torch.bfloat16) * 0.05)(B, S, D)),
            "wqkv": _w((lambda *s: torch.randn(*s, dtype=torch.bfloat16) * 0.4)(D, 3 * D)),
            "wo": _w((lambda *s: torch.randn(*s, dtype=torch.bfloat16) * 0.2)(D, D)),
        }
    _A_in = _A_setup()

    def _B_setup():
        B, S, D, F = 1, 2048, 576, 4608
        return {
            "x": _w((lambda *s: torch.randn(*s, dtype=torch.bfloat16) * 0.05)(B, S, D)),
            "w_gate": _w((lambda *s: torch.randn(*s, dtype=torch.bfloat16) * 0.05)(D, F)),
            "w_up": _w((lambda *s: torch.randn(*s, dtype=torch.bfloat16) * 0.05)(D, F)),
            "w_down": _w((lambda *s: torch.randn(*s, dtype=torch.bfloat16) * 0.05)(F, D)),
        }
    _B_in = _B_setup()

    return {
        "A_x": _A_in["x"],
        "A_wqkv": _A_in["wqkv"],
        "A_wo": _A_in["wo"],
        "B_x": _B_in["x"],
        "B_w_gate": _B_in["w_gate"],
        "B_w_up": _B_in["w_up"],
        "B_w_down": _B_in["w_down"],
    }

def reference(A_x, A_wqkv, A_wo, B_x, B_w_gate, B_w_up, B_w_down):
    def _A_ref(x, wqkv, wo):
        B, S, D = x.shape
        H = 32; Dh = D // H
        qkv = (lambda x, *d: x.permute(*d))((x @ wqkv).reshape(B, S, 3, H, Dh), 2, 0, 3, 1, 4)
        q, k, v = qkv[0], qkv[1], qkv[2]
        phi = lambda t: torch.where(t > 0, t + 1, torch.exp(t)) + 1e-6
        pq, pk = phi(q), phi(k)
        kv = torch.einsum("bhsd,bhse->bhde", pk, v)
        z = torch.einsum("bhsd->bhd", pk)
        num = torch.einsum("bhqd,bhde->bhqe", pq, kv)
        den = torch.einsum("bhqd,bhd->bhq", pq, z)[..., None] + 1e-6
        o = num / den
        return (lambda x, *d: x.permute(*d))(o, 0, 2, 1, 3).reshape(B, S, D) @ wo

    def _B_ref(x, w_gate, w_up, w_down):
        return (_gelu(x @ w_gate) * (x @ w_up)) @ w_down

    x = A_x
    xn = _layernorm(x, axis=-1)
    return x + _A_ref(xn, A_wqkv, A_wo) + _B_ref(xn, B_w_gate, B_w_up, B_w_down)
```

```python
import re

def _regs(tok):
    tok = tok.strip()
    neg = tok.lstrip('-')
    if neg.startswith('abs(') and neg.endswith(')'): neg = neg[4:-1]
    if neg.startswith('|') and neg.endswith('|'): neg = neg[1:-1]
    m = re.fullmatch(r'([vas])\[(\d+):(\d+)\]', neg)
    if m: return [f"{m.group(1)}{i}" for i in range(int(m.group(2)), int(m.group(3)) + 1)]
    m = re.fullmatch(r'([vas])(\d+)', neg)
    if m: return [neg]
    if neg in ('vcc', 'exec', 'm0', 'scc'): return [neg]
    if neg in ('vcc_lo', 'vcc_hi'): return ['vcc']
    if neg in ('exec_lo', 'exec_hi'): return ['exec']
    return []

TRANS = ('v_exp_f32', 'v_log_f32', 'v_rcp_f32', 'v_rsq_f32', 'v_sqrt_f32', 'v_sin_f32', 'v_cos_f32')

class I:
    __slots__ = ('text', 'op', 'kind', 'rd', 'wr', 'tag', 'mf', 'extra', 'isdot', 'isdpp', 'isperm', 'wide')
    def __init__(self, text, tag=None):
        self.text = text.strip(); self.tag = tag; self.extra = None
        self.mf = None; self.isdot = False; self.isdpp = False; self.isperm = False; self.wide = False
        t = self.text.split(';')[0].strip()
        if t.endswith(':') or t.startswith('.') or t == '':
            self.op = 'label'; self.kind = 'label'; self.rd = set(); self.wr = set(); return
        sp = t.split(None, 1)
        op = sp[0]; rest = sp[1] if len(sp) > 1 else ''
        self.op = op
        parts = [p.strip() for p in rest.split(',')] if rest else []
        ops = []; mods = []
        mm = re.search(r'\s(quad_perm|row_shr|row_shl|row_ror|row_mirror|row_half_mirror|row_bcast|row_newbcast|op_sel|op_sel_hi|neg_lo|neg_hi|offset|offen|lds|sc0|sc1|nt|clamp|mul:|div:|dst_sel|offset0|cbsz|abid|blgp)\b', ' ' + rest)
        if mm:
            cut = mm.start()
            modstr = (' ' + rest)[cut:]
            rest2 = (' ' + rest)[:cut]
        else:
            modstr = ''; rest2 = rest
        ops = [p.strip() for p in rest2.split(',') if p.strip()]
        R = [_regs(o) for o in ops]
        rd = set(); wr = set()
        base = op.replace('_e32', '').replace('_e64', '').replace('_dpp', '')
        if op.startswith('v_mfma'):
            self.kind = 'mfma'
            wr |= set(R[0]); rd |= set(R[1]) | set(R[2]) | set(R[3])
            self.mf = (R[0], R[1], R[2], R[3])
        elif op.startswith('ds_read') or op.startswith('ds_bpermute') or op.startswith('ds_swizzle'):
            self.kind = 'dsr'; wr |= set(R[0])
            for r in R[1:]: rd |= set(r)
        elif op.startswith('ds_'):
            self.kind = 'dsw'
            for r in R: rd |= set(r)
        elif op.startswith('buffer_load') or op.startswith('global_load'):
            self.kind = 'vm'
            if ' lds' in modstr or op.startswith('global_load_lds'):
                for r in R: rd |= set(r)
                rd.add('m0'); self.extra = 'dma'
            else:
                wr |= set(R[0])
                for r in R[1:]: rd |= set(r)
        elif op.startswith('buffer_store') or op.startswith('global_store'):
            self.kind = 'vm'; self.extra = 'store'
            for r in R: rd |= set(r)
            if op.endswith('x4') or op.endswith('x3'):
                self.wide = True
                self.mf = R[0] if op.startswith('buffer') else R[1]
        elif op.startswith('global_atomic') or op.startswith('buffer_atomic'):
            self.kind = 'vm'; self.extra = 'atomic'
            if ' sc0' in modstr and op.startswith('global'):
                wr |= set(R[0])
                for r in R[1:]: rd |= set(r)
            else:
                for r in R: rd |= set(r)
        elif op.startswith('buffer_wbl2') or op.startswith('buffer_inv'):
            self.kind = 'vm'; self.extra = 'cache'
        elif op.startswith('s_load') or op.startswith('s_memtime') or op.startswith('s_memrealtime'):
            self.kind = 'smem'; wr |= set(R[0])
            for r in R[1:]: rd |= set(r)
        elif op in ('s_waitcnt', 's_nop', 's_barrier', 's_endpgm', 's_setprio', 's_sleep') or op.startswith('s_cbranch') or op == 's_branch':
            self.kind = 'sctl'
            if op.startswith('s_cbranch_scc'): rd.add('scc')
            if op.startswith('s_cbranch_vcc'): rd.add('vcc')
            if op.startswith('s_cbranch_exec'): rd.add('exec')
        elif op.startswith('s_'):
            self.kind = 'salu'
            if op.startswith('s_cmp') or op.startswith('s_bitcmp'):
                for r in R: rd |= set(r)
                wr.add('scc')
            else:
                wr |= set(R[0])
                for r in R[1:]: rd |= set(r)
                if op.startswith(('s_cselect', 's_addc', 's_subb', 's_cmov')): rd.add('scc')
                if not op.startswith(('s_mov', 's_cselect', 's_mul', 's_getpc', 's_getreg', 's_cmov')): wr.add('scc')
                if 'saveexec' in op: rd.add('exec'); wr.add('exec')
                if op.startswith(('s_addk', 's_mulk')): rd |= set(R[0])
        elif op.startswith('v_'):
            self.kind = 'trans' if base in TRANS else 'valu'
            if op.startswith('v_cmp'):
                wr |= set(R[0])
                for r in R[1:]: rd |= set(r)
                if op.startswith('v_cmpx'): wr.add('exec')
            elif op.startswith('v_permlane') and 'swap' in op:
                rd |= set(R[0]) | set(R[1]); wr |= set(R[0]) | set(R[1]); self.isperm = True
            elif base in ('v_add_co_u32', 'v_sub_co_u32', 'v_addc_co_u32', 'v_subb_co_u32', 'v_mad_u64_u32'):
                wr |= set(R[0]) | set(R[1])
                for r in R[2:]: rd |= set(r)
            else:
                wr |= set(R[0])
                for r in R[1:]: rd |= set(r)
                if base in ('v_fmac_f32', 'v_dot2c_f32_bf16', 'v_writelane_b32'): rd |= set(R[0])
                if base.startswith('v_dot'): self.isdot = True
                if '_dpp' in op or 'quad_perm' in modstr or 'row_' in modstr:
                    self.isdpp = True; rd |= set(R[0])
        else:
            raise ValueError("unknown op " + text)
        self.rd = rd; self.wr = wr
    def __repr__(self): return self.text

class Wait:
    kind = 'wait'
    def __init__(self, vm=None, lg=None, regs=None, allvm=False, alllg=False):
        self.vm = vm; self.lg = lg; self.regs = set(regs or []); self.allvm = allvm; self.alllg = alllg
        self.rd = set(); self.wr = set(); self.text = 'WAIT'; self.op = 'wait'; self.tag = None

class Reset:
    kind = 'label'; text = ''; op = 'label'
    rd = set(); wr = set(); tag = None

def isvec(r): return r[0] in 'va' and r[1:].isdigit()

def postpass(stream, verbose=False):
    out = []
    vmq = []
    lgq = []
    smem_pending = set()
    auto = 0
    def emit_wait(nvm, nlg):
        parts = []
        if nvm is not None:
            assert nvm <= 63, nvm
            parts.append(f"vmcnt({nvm})"); del vmq[:len(vmq) - nvm]
        if nlg is not None:
            n = min(nlg, 15)
            parts.append(f"lgkmcnt({n})"); del lgq[:len(lgq) - n]
            if n == 0: smem_pending.clear()
        if parts: out.append(I("s_waitcnt " + " ".join(parts)))
    def need(q, pred):
        idx = -1
        for i, ent in enumerate(q):
            if pred(ent): idx = i
        return None if idx < 0 else len(q) - 1 - idx
    for ins in stream:
        if ins.kind == 'wait':
            nvm = nlg = None
            if ins.allvm and vmq: nvm = 0
            if ins.alllg and (lgq or smem_pending): nlg = 0
            tv = ins.vm if isinstance(ins.vm, (list, tuple, set)) else ([ins.vm] if ins.vm is not None else [])
            tl = ins.lg if isinstance(ins.lg, (list, tuple, set)) else ([ins.lg] if ins.lg is not None else [])
            a = need(vmq, lambda e: e[0] in tv or (e[1] & ins.regs))
            if a is not None: nvm = a if nvm is None else min(nvm, a)
            b = need(lgq, lambda e: e[0] in tl or (e[1] & ins.regs))
            if b is not None: nlg = b if nlg is None else min(nlg, b)
            if nlg is not None and smem_pending: nlg = 0
            if nvm is not None and nvm > 63: nvm = 63
            emit_wait(nvm, nlg)
            continue
        if ins.kind == 'label':
            out.append(ins); continue
        if ins.op == 's_waitcnt':
            m = re.search(r'vmcnt\((\d+)\)', ins.text)
            if m: del vmq[:max(0, len(vmq) - int(m.group(1)))]
            m = re.search(r'lgkmcnt\((\d+)\)', ins.text)
            if m:
                del lgq[:max(0, len(lgq) - int(m.group(1)))]
                if int(m.group(1)) == 0: smem_pending.clear()
            out.append(ins); continue
        touched = ins.rd | ins.wr
        a = need(vmq, lambda e: e[1] & touched)
        b = need(lgq, lambda e: e[1] & touched)
        if touched & smem_pending: b = 0
        if b is not None and smem_pending: b = 0
        if a is not None or b is not None:
            auto += 1
            if verbose: print("auto wait before", ins.text, a, b)
            emit_wait(a, b)
        if ins.kind == 'vm':
            if len(vmq) >= 63:
                emit_wait(62, None)
            vmq.append((ins.tag, set(ins.wr)))
        elif ins.kind in ('dsr', 'dsw'):
            lgq.append((ins.tag, set(ins.wr)))
        elif ins.kind == 'smem':
            smem_pending |= ins.wr
        out.append(ins)
    out2, nn = hazards(out)
    return out2, auto, nn

def states(ins):
    if ins.kind == 'label': return 0
    if ins.op == 's_nop': return int(ins.text.split()[1], 0) + 1
    return 1

def passes(ins):
    if '32x32' in ins.op: return 8
    return 4

def required(p, c):
    need = 0
    pv = p.kind in ('valu', 'trans')
    cv = c.kind in ('valu', 'trans')
    if pv:
        vw = {r for r in p.wr if isvec(r)}
        sw = {r for r in p.wr if not isvec(r)}
        if c.kind == 'mfma' and (vw & c.rd): need = max(need, 3 if p.isdot else 2)
        if c.kind == 'mfma' and 'exec' in sw: need = max(need, 4)
        if cv:
            if p.kind == 'trans' and c.kind != 'trans' and (vw & c.rd): need = max(need, 1)
            if c.isdpp and (vw & c.rd): need = max(need, 2)
            if c.isdpp and 'exec' in sw: need = max(need, 5)
            if c.isperm and (vw & c.rd): need = max(need, 2)
            if c.op.startswith(('v_readfirstlane', 'v_readlane')) and (vw & c.rd): need = max(need, 1)
            if c.op.startswith(('v_readfirstlane', 'v_readlane', 'v_writelane', 'v_permlane')) and 'exec' in sw: need = max(need, 4)
            if sw & c.rd: need = max(need, 4 if c.op.startswith(('v_readlane', 'v_writelane')) else 2)
            if p.isdot and (vw & (c.rd | c.wr)):
                same = (p.op == c.op)
                ops = [o.strip() for o in c.text.split(None, 1)[1].split(',')]
                ab = set(_regs(ops[1])) | set(_regs(ops[2]))
                if not same or (vw & ab): need = max(need, 3)
        if p.isdot and c.kind in ('vm', 'dsw', 'dsr') and (vw & c.rd): need = max(need, 3)
        if c.kind in ('vm', 'vmx') and (sw & c.rd): need = max(need, 5)
        if c.kind in ('salu', 'sctl', 'smem') and (sw & c.rd): need = max(need, 1)
    if p.kind == 'mfma':
        D = set(p.mf[0]); n = passes(p)
        tabAB = {4: 8, 8: 12}[n]; tabC = {4: 6, 8: 10}[n]; war = {4: 3, 8: 7}[n]
        if c.kind == 'mfma':
            if D & (set(c.mf[1]) | set(c.mf[2])): need = max(need, tabAB)
            if D & set(c.mf[3]):
                if not (c.mf[3] == p.mf[0] and passes(c) == n): need = max(need, tabC)
            elif D & set(c.mf[0]):
                need = max(need, tabC)
        elif cv or c.kind in ('vm', 'vmx', 'dsr', 'dsw'):
            if D & (c.rd | c.wr): need = max(need, tabAB)
            if cv and (set(p.mf[3]) & c.wr): need = max(need, war)
    if p.kind == 'salu' and 'm0' in p.wr and c.kind == 'vm' and 'm0' in c.rd: need = max(need, 1)
    if p.kind == 'vm' and p.wide and (set(p.mf) & c.wr): need = max(need, 2)
    if p.kind == 'dsw' and cv and False: pass
    return need

def hazards(stream):
    out = []; nn = 0
    for c in stream:
        if c.kind != 'label':
            dist = 0; pad = 0
            for p in reversed(out):
                if dist >= 20: break
                if p.kind != 'label':
                    r = required(p, c)
                    if r > dist: pad = max(pad, r - dist)
                dist += states(p)
            if pad:
                while pad > 0:
                    k = min(pad, 16); out.append(I(f"s_nop {k-1}")); pad -= k; nn += 1
        out.append(c)
    return out, nn

class Filler:
    def __init__(self):
        self.items = []
        self.clock = 0
    def add(self, ins, notbefore=0, group=None, after=None, barrier_dep=None):
        if isinstance(ins, str): ins = I(ins)
        it = dict(ins=ins, deps=[], at=None, nb=notbefore, group=group, gate=barrier_dep)
        for p in self.items:
            q = p['ins']
            raw = q.wr & ins.rd; waw = q.wr & ins.wr; war = q.rd & ins.wr
            mem = (q.kind in ('dsr', 'dsw', 'vm', 'wait', 'sctl', 'label') and ins.kind in ('dsr', 'dsw', 'vm', 'wait', 'sctl', 'label') and p['group'] == group)
            if raw or waw or war or mem:
                lat = 1
                if raw:
                    if q.kind == 'trans': lat = 3
                    elif q.kind == 'mfma': lat = 9
                    elif q.kind == 'dsr': lat = 24
                    elif q.kind == 'vm': lat = 200
                    elif q.isdot: lat = 4
                    elif ins.kind == 'mfma' or ins.isdpp or ins.isperm or any(not isvec(r) for r in raw): lat = 3
                    else: lat = 2
                elif q.kind == 'mfma': lat = 9
                elif q.kind == 'vm' and q.wide: lat = 3
                it['deps'].append((p, lat))
        if after:
            for p in after: it['deps'].append((p, 1))
        self.items.append(it)
        return it
    def ready(self, it, gates):
        if it['nb'] > self.clock: return False
        if it['gate'] is not None and it['gate'] not in gates: return False
        for p, lat in it['deps']:
            if p['at'] is None or p['at'] + lat > self.clock: return False
        return True
    def take(self, it):
        it['at'] = self.clock
        self.items.remove(it)
        return it['ins']
```

```python
import sys, math, struct
from asmlib import *

KN = "parallel_sum__linear_attn_block__geglu_ffn__prompt"
HDR = open("cdna_kernels/" + KN + ".s.ref").read().split("; Override launch")[0]

def f32(x): return "0x%08x" % struct.unpack("<I", struct.pack("<f", x))[0]

RING = 0; HB = 65536; OB = HB + 73728; MISC = OB + 16384
KVS = OB
KVT = OB + 12288
SUMB = MISC
ZQ = MISC + 3072
PBASE = 1 << 20
PSTRIDE_J = 2359296; PSTRIDE_M = 147456
RECB = 48 << 20
WSREC = 64 << 20
STAMP = 128 << 20

vLane = 0
vT = [1, 2, 3, 4]
vDMA0 = 4
TB0 = 8;  vDMA1, vDMAh, vDMA2, vXW = 8, 9, 10, 11
TB1 = 12; vTR1 = (12, 13); vTRh = 14; vREC = 15
TB2 = 16; vTR2 = (16, 17); vHW = (18, 19)
TB3 = 20
TB5 = 28
PQ = 32
XV = 44
ACC = (76, 140)
FR = 204; NF = 6
WIN = 228
vT2 = [5, 6, 7, 252, 253, 254, 255]
sX, sQKV, sWO, sWG, sWU, sWD, sWS = 24, 28, 32, 36, 40, 44, 48
sW, sJ, sMT, sM0, sQ, sG, sGh, sD, sDh, sO, sP, sREC = 52, 53, 54, 55, 56, 57, 58, 59, 60, 61, 62, 63
sK, sC1, sL2E, sIA, sEPS, sA2 = 64, 65, 66, 67, 68, 69
sSO = [70, 71, 72, 73]
sMK, sM1, sMG = 74, 76, 78
sTB = 80
sT = [82, 83, 84, 85, 86, 87]
sST = 88

def R(b, n, k='v'): return f"{k}[{b}:{b+n-1}]" if n > 1 else f"{k}{b}"
def srd(b): return f"s[{b}:{b+3}]"
def XN(lt, t, n=4):
    return R((lt * 16 + t) * 4, n, 'a') if t < 16 else R(XV + (lt * 2 + t - 16) * 4, n)

def build_table():
    T = []
    for var in range(8):
        w = var & 3; odd = var >> 2; rg = w >> 1; p = w & 1
        G = [[None] * 64 for _ in range(11)]
        for l in range(64):
            g = l >> 4; r = (l >> 2) & 3; c4 = l & 3; i = l & 15
            row8 = l >> 3; pos = l & 7
            f = ((row8 >> 1) & 1) | ((w & 1) << 1)
            dma1 = (8 * w + row8) * 9216 + (pos ^ (f << 1)) * 16
            row16 = l >> 2; pos4 = l & 3
            dmah = (16 * w + row16) * 9216 + (pos4 ^ (((row16 >> 3) & 1) << 1)) * 16
            f2 = (row8 >> 1) & 3
            dma2 = (8 * w + row8) * 1152 + (pos ^ (f2 << 1)) * 16
            tb = (l >> 2) & 1; gg = l & 3; s = l >> 3
            xw = HB + w * 18432 + tb * 1024 + (gg * 16 + (s ^ (2 * gg + tb))) * 16
            G[0][l] = [dma1, dmah, dma2, xw]
            f = ((r >> 1) & 1) | ((g & 1) << 1)
            tr1 = [g * 4096 + r * 128 + (((2 * p + tau) ^ f) << 5) + c4 * 8 for tau in range(2)]
            trh = (g >> 1) * 4096 + (8 * (g & 1) + r) * 64 + ((p ^ (g & 1)) << 5) + c4 * 8
            rec = (48 * w + l) * 16 if l < 48 else 0x7ff00000
            G[1][l] = [tr1[0], tr1[1], trh, rec]
            f = 2 * (g & 1) + (r >> 1)
            tr2 = [(g >> 1) * 4096 + (4 * (g & 1) + r) * 128 + (((2 * p + tau) ^ f) << 5) + c4 * 8 for tau in range(2)]
            hw0 = HB + p * 8192 + (4 * rg + 2 * p) * 1024 + l * 16
            hw1 = HB + p * 8192 + (4 * rg + 2 - 2 * p) * 1024 + l * 16
            G[2][l] = [tr2[0], tr2[1], hw0, hw1]
            f = r | ((g & 1) << 2)
            def tr0(seg, u):
                byte = seg * 80 + (u + odd) * 8
                return g * 4096 + r * 256 + (((byte >> 4) ^ (f << 1)) << 4) + ((byte >> 3) & 1) * 8
            t0 = [tr0(0, c4), tr0(0, 4 + c4), tr0(0, 8), tr0(1, c4), tr0(1, 4 + c4), tr0(2, c4), tr0(2, 4 + c4), tr0(1 + (c4 & 1), 8)]
            G[3][l] = t0[:4]; G[4][l] = t0[4:]
            def xr(ww, tb): return HB + ww * 18432 + (g * 16 + (i ^ (2 * g + tb))) * 16
            G[5][l] = [xr(w, 0), xr(w, 1), xr(w ^ 1, 0), xr(w ^ 1, 1)]
            def kvaddr(kx, vy):
                if vy == 0: row = i
                elif vy == 1: row = 16 + i
                else: row = 28 + i if 4 <= i <= 9 else None
                quad = g if kx == 0 else (4 + g if kx == 1 else (8 if g == 0 else None))
                if row is None or quad is None: return KVT + l * 16
                head = (1 if row >= 18 else 0) if row < 36 else row - 36
                qq = quad - 4 * head
                if not 0 <= qq <= 4: return KVT + l * 16
                return KVS + w * 3072 + (row * 5 + qq) * 16
            ka = [kvaddr(kx, vy) for kx, vy in KVPROD]
            G[6][l] = ka[:4]; G[7][l] = ka[4:]
            def ga(row, quad):
                if row is None: return ZQ
                head = (1 if row >= 18 else 0) if row < 36 else row - 36
                qq = quad - 4 * head
                if not 0 <= qq <= 4: return ZQ
                return SUMB + (row * 5 + qq) * 16
            rowD = 36 + (i & 1); row0 = i; row1 = 16 + i; row2 = 32 + i if i < 4 else None
            f1 = lambda row: ga(row, 8) if g == 0 else ZQ
            n = 48 * w + l
            row_n, qq_n = divmod(n, 5)
            head_n = (1 if row_n >= 18 else 0) if row_n < 36 else row_n - 36
            mlo = 0 if (head_n == 1 and qq_n == 0) else 0xffffffff
            mhi = 0 if (head_n == 0 and qq_n == 4) else 0xffffffff
            G[8][l] = [ga(rowD, g), ga(rowD, 4 + g), f1(rowD), ga(row0, g)]
            G[9][l] = [ga(row0, 4 + g), ga(row1, g), ga(row1, 4 + g), f1(row1)]
            G[10][l] = [ga(row2, 4 + g), f1(row2), mlo, mhi]
        T.append(G)
    return T
KVPROD = [(0, 0), (0, 1), (0, 2), (1, 0), (1, 1), (1, 2), (2, 1), (2, 2)]
NGRP = 11

class Mark:
    kind = 'label'; op = 'label'; text = ''; tag = None; isdot = False; isdpp = False; isperm = False; wide = False
    def __init__(self, gate, vm=None): self.gate = gate; self.vm = vm; self.rd = set(); self.wr = set()

class Raw:
    kind = 'sctl'; op = 'raw'; tag = None; isdot = False; isdpp = False; isperm = False; wide = False
    def __init__(self, ins, rd=(), wr=()):
        self.ins = [I(x) if isinstance(x, str) else x for x in ins]; self.text = 'RAW'
        self.rd = set(rd); self.wr = set(wr)
        for x in self.ins: self.rd |= x.rd; self.wr |= x.wr

class Gen:
    def __init__(s, alpha=False, chain=1, stamps=False, D=4, dump=None, overlap=True):
        s.alpha = alpha; s.chain = chain; s.stamps = stamps; s.D = D; s.dump = dump; s.overlap = overlap
        s.S = []
        s.F = Filler()
        s.gates = set(); s.pending_marks = []
        s.vmorder = []
        s.nst = 0
        s.tail = []
        s.nextra = 0; s.flushlog = []
    def e(s, x, tag=None):
        ins = I(x, tag) if isinstance(x, str) else x
        if isinstance(ins, Raw):
            for y in ins.ins: s.e(y)
            return
        if isinstance(ins, Mark):
            s.pending_marks.append(ins); return
        if ins.kind == 'vm': s.vmorder.append(ins.tag)
        s.S.append(ins)
    def stamp(s):
        if s.stamps:
            s.e(f"s_memrealtime s[{sST+2*s.nst}:{sST+2*s.nst+1}]"); s.nst += 1
            s.e(Wait(alllg=True))
    def barrier(s, vmtag=None):
        s.e(Wait(vm=vmtag, alllg=True)); s.e("s_barrier")
        cov = -1
        if vmtag is not None:
            for k, t in enumerate(s.vmorder):
                if t == vmtag: cov = k
        keep = []
        for m in s.pending_marks:
            ok = True
            if m.vm is not None:
                last = max(k for k, t in enumerate(s.vmorder) if t == m.vm)
                ok = last <= cov
            if ok: s.gates.add(m.gate)
            else: keep.append(m)
        s.pending_marks = keep

    def make_stages(s):
        st = []
        for k in range(9):
            st.append([(sQKV, vDMA0, sQ, (64 * k + 32 * (q >> 1) + 4 * (q & 1)) * 3456) for q in range(4)])
        for b in range(4):
            for k in range(9):
                st.append([((sWG, sWU)[q & 1], vDMA1, sG, b * 128 + (64 * k + 32 * (q >> 1)) * 9216) for q in range(4)])
        for k in range(5):
            st.append([((sWG, sWU)[q & 1], vDMAh, sGh, (128 * k + 64 * (q >> 1)) * 9216) for q in range(4 if k < 4 else 2)])
        units = []
        for nb in range(9):
            for ks in range(11):
                if ks < 8: units.append((sWD, vDMA2, sD, nb * 128 + 32 * ks * 1152))
                elif ks == 8: units.append((sWD, vDMA2, sDh, nb * 128))
                else: units.append((sWO, vDMA2, sO, nb * 128 + 32 * (ks - 9) * 1152))
        for k in range(0, 99, 4): st.append(units[k:k + 4])
        s.stages = st
        s.P1 = 9; s.PH = 45; s.P2 = 50
    def dma_items(s, si):
        out = [I(f"s_add_u32 m0, s{sM0}, {RING + (si % 4) * 16384}")]
        for q, (sr, vo, sb, c) in enumerate(s.stages[si]):
            so = sSO[q]
            cc = c - q * 1024
            out.append(I(f"s_add_u32 s{so}, s{sb}, {cc}" if cc >= 0 else f"s_sub_u32 s{so}, s{sb}, {-cc}"))
            out.append(I(f"buffer_load_dwordx4 v{vo}, {srd(sr)}, s{so} offen offset:{q*1024} lds", tag=f"st{si}"))
        return out

    def make_backbone(s):
        frags = []; groups = []
        def addfrag(si, base, offs):
            frags.append((si, base, [(si % 4) * 16384 + o for o in offs])); return len(frags) - 1
        M = "v_mfma_f32_16x16x32_bf16"
        def emit_chain(items, hook=None):
            fids = [it[0] for it in items]
            ms = []
            for a in range(len(items[0][1])):
                for k, it in enumerate(items):
                    ms.append((k,) + it[1][a])
            groups.append((fids, ms, hook))
        ch = s.chain
        for k in range(9):
            order = [(kk, T) for kk in range(2) for T in range(8)] if ch == 1 else [(None, T) for T in range(8)]
            for kk, T in order:
                its = []
                for k2 in ([kk] if ch == 1 else [0, 1]):
                    f = addfrag(k, TB3 + T, [(2 * k2) * 1024, (2 * k2 + 1) * 1024])
                    t = 2 * k + k2
                    its.append((f, [(ACC[1] + (T * 2 + lt) * 4, XN(lt, t), t == 0, T >= 3, 32) for lt in range(2)]))
                emit_chain(its)
        groups.append(([], [], "ph0_done"))
        for b in range(4):
            for k in range(9):
                si = s.P1 + b * 9 + k
                order = [(kk, q) for kk in range(2) for q in range(4)] if ch == 1 else [(None, q) for q in range(4)]
                for kk, q in order:
                    tau, mat = q >> 1, q & 1
                    its = []
                    for k2 in ([kk] if ch == 1 else [0, 1]):
                        f = addfrag(si, vTR1[tau], [(2 * k2 + mat) * 1024, (2 * k2 + mat) * 1024 + 512])
                        t = 2 * k + k2
                        its.append((f, [(ACC[b & 1] + (q * 4 + lt) * 4, XN(lt, t), t == 0, False, 32) for lt in range(4)]))
                    emit_chain(its)
            groups.append(([], [], f"blk{b}_done"))
        for k in range(5):
            si = s.PH + k
            nk = 4 if k < 4 else 2
            order = [([kk], mat) for kk in range(nk) for mat in range(2)] if ch == 1 else [([k0, k0 + 1], mat) for k0 in range(0, nk, 2) for mat in range(2)]
            for kks, mat in order:
                its = []
                for k2 in kks:
                    o = (k2 & 1) * 8192 + ((k2 >> 1) * 2 + mat) * 1024
                    f = addfrag(si, vTRh, [o, o + 256])
                    t = 4 * k + k2
                    its.append((f, [(ACC[0] + (mat * 4 + lt) * 4, XN(lt, t), t == 0, False, 32) for lt in range(4)]))
                emit_chain(its)
        groups.append(([], [], "half_done"))
        for nb in range(9):
            kss = [[ks] for ks in range(11)] if ch == 1 else [[0, 1], [2, 3], [4, 5], [6, 7], [8, 9], [10]]
            for ksl in kss:
                for tau in range(2):
                    its = []
                    for ks in ksl:
                        U = nb * 11 + ks
                        si = s.P2 + U // 4; u = U % 4
                        f = addfrag(si, vTR2[tau], [u * 1024, u * 1024 + 8192] if ks < 10 else [u * 1024])
                        a0 = ACC[1] + (nb & 1) * 32
                        its.append((f, [(a0 + (lt * 2 + tau) * 4, XN(lt, ks, 4 if ks < 10 else 2), ks == 0, False, 32 if ks < 10 else 16) for lt in range(4)]))
                    emit_chain(its)
            groups.append(([], [], f"nb{nb}_done"))
        s.frags = frags; s.groups = groups

    def fragreg(s, f): return FR + (f % NF) * 4
    def read_items(s, f):
        si, base, offs = s.frags[f]
        return [I(f"ds_read_b64_tr_b16 {R(s.fragreg(f) + 2 * k, 2)}, v{base} offset:{o}") for k, o in enumerate(offs)]

    def flush(s, pred=None):
        need = []
        seen = set()
        def visit(it):
            if id(it) in seen or it['at'] is not None: return
            seen.add(id(it))
            for d, _ in it['deps']: visit(d)
            if it['gate'] is not None and it['gate'] not in s.gates:
                for m in s.F.items:
                    if isinstance(m['ins'], Mark) and m['ins'].gate == it['gate']: visit(m)
        for it in list(s.F.items):
            if pred is None or pred(it): visit(it)
        n = len(seen)
        while True:
            todo = [it for it in s.F.items if id(it) in seen]
            if not todo: break
            rdy = [it for it in todo if s.F.ready(it, s.gates)]
            if rdy:
                s.e(s.F.take(rdy[0])); s.F.clock += 1; continue
            lat = [it for it in todo if (it['gate'] is None or it['gate'] in s.gates) and all(d[0]['at'] is not None for d in it['deps'])]
            if lat: s.F.clock += 1; continue
            assert s.pending_marks, [it['ins'].text for it in todo[:5]]
            vm = [m.vm for m in s.pending_marks if m.vm is not None]
            s.barrier(vm[-1] if vm else None)
            s.nextra += 1
        s.flushlog.append(n)

    def run_backbone(s, hooks):
        D = s.D
        nfr = len(s.frags)
        rq = []
        nextread = 0
        cur_stage = -1
        dq = []
        def open_stage(si):
            nonlocal cur_stage
            while dq: s.e(dq.pop(0))
            s.barrier(f"st{si}")
            cur_stage = si
            if si + 3 < len(s.stages) and si >= 1: dq.extend(s.dma_items(si + 3))
        open_stage(0)
        while nextread < D:
            for x in s.read_items(nextread): s.e(x)
            nextread += 1
        mlist = []
        for gi, (fids, ms, hook) in enumerate(s.groups):
            if hook: mlist.append(('hook', hook)); continue
            for k, m in enumerate(ms): mlist.append(('m', fids, m, k == 0, k == len(ms) - 1))
        s.e(Wait(regs=[f"v{s.fragreg(f)+k}" for f in mlist[0][1] for k in range(4)]))
        for idx, ent in enumerate(mlist):
            if ent[0] == 'hook':
                hooks(ent[1]); continue
            _, fids, (k, acc, other, first, swap, K), isfirst, islast = ent
            fr = s.fragreg(fids[k])
            n = 4 if K == 32 else 2
            A, B = R(fr, n), other
            if swap: A, B = B, A
            C = "0" if first else R(acc, 4)
            op = "v_mfma_f32_16x16x32_bf16" if K == 32 else "v_mfma_f32_16x16x16_bf16"
            s.e(f"{op} {R(acc,4)}, {A}, {B}, {C}")
            s.F.clock += 2
            sc = True; v = 2
            lim = min(min(fids) + NF, max(fids) + D + 1, nfr)
            if islast:
                nxt = next((x for x in mlist[idx + 1:] if x[0] == 'm'), None)
                if nxt is not None:
                    while rq and rq[0][1] <= max(nxt[1]):
                        s.e(rq.pop(0)[0]); v -= 1
                    assert nextread > max(nxt[1]), (nextread, nxt[1])
                    s.e(Wait(regs=[f"v{s.fragreg(f)+q}" for f in nxt[1] for q in range(4)])); sc = False
            if not rq and nextread < lim:
                si = s.frags[nextread][0]
                if si > cur_stage:
                    open_stage(si); sc = False; v = 0
                rq.extend((x, nextread) for x in s.read_items(nextread)); nextread += 1
            if sc and dq and dq[0].kind == 'salu':
                s.e(dq.pop(0)); sc = False
            elif sc:
                for it in s.F.items:
                    if it['ins'].kind in ('salu', 'label', 'wait') and s.F.ready(it, s.gates):
                        s.e(s.F.take(it)); sc = False; break
            if v == 2 and rq:
                s.e(rq.pop(0)[0]); v -= 1
            elif v == 2 and sc and dq and dq[0].kind == 'vm':
                s.e(dq.pop(0)); v = 0
            while v > 0:
                cand = None
                rdy = [it for it in s.F.items if s.F.ready(it, s.gates)]
                if v == 2:
                    big = [it for it in rdy if it['ins'].kind in ('trans', 'dsw', 'vm', 'sctl', 'mfma', 'dsr')]
                    if big: cand = big[0]
                if cand is None:
                    sm = [it for it in rdy if it['ins'].kind in ('valu', 'salu', 'label', 'wait')]
                    if sm: cand = sm[0]
                if cand is None: break
                kd = cand['ins'].kind
                s.e(s.F.take(cand))
                if kd in ('label',): continue
                c = 2 if kd in ('trans', 'dsw', 'vm', 'sctl', 'mfma') else 1
                v -= c; s.F.clock += c
            s.F.clock += max(v, 0)
        while dq: s.e(dq.pop(0))

    def phi(s, r, t, grp, nb):
        F = s.F
        F.add(f"v_mul_f32 v{t}, s{sL2E}, v{r}", nb, grp)
        F.add(f"v_min_f32 v{t}, 0, v{t}", nb, grp)
        F.add(f"v_exp_f32 v{t}, v{t}", nb, grp)
        if s.alpha: F.add(f"v_fma_f32 v{r}, v{r}, s{sIA}, v{vT2[6]}", nb, grp)
        else: F.add(f"v_add_f32 v{r}, s{sEPS}, v{r}", nb, grp)
        F.add(f"v_max_f32 v{r}, s{sEPS}, v{r}", nb, grp)
        F.add(f"v_add_f32 v{r}, v{r}, v{t}", nb, grp)

    def ph0_epilogue(s):
        F = s.F; nb = F.clock + 10; g = 'ph0'
        A = ACC[1]
        tmp = vT + vT2[:6]; ti = 0
        if s.alpha: F.add(f"v_mov_b32 v{vT2[6]}, s{sEPS}", 0, g)
        reg = lambda T, lt, r: A + (T * 2 + lt) * 4 + r
        for T in (3, 4):
            for q in range(8):
                s.phi(reg(T, 0, q), tmp[ti % len(tmp)], g, nb); ti += 1
        if s.alpha:
            for T in (5, 6):
                for q in range(8): F.add(f"v_mul_f32 v{reg(T,0,q)}, s{sIA}, v{reg(T,0,q)}", nb, g)
        for q in range(8):
            r = reg(7, 0, q); t = tmp[ti % len(tmp)]; ti += 1
            t2 = WIN + 8 + q
            if s.alpha: F.add(f"v_mul_f32 v{t2}, s{sIA}, v{r}", nb, g)
            else: F.add(f"v_mov_b32 v{t2}, v{r}", nb, g)
            s.phi(r, t, g, nb)
            F.add(f"v_cndmask_b32 v{r}, v{t2}, v{r}, s[{sMK}:{sMK+1}]", nb, g)
            F.add(f"v_cndmask_b32 v{r}, v{r}, 1.0, s[{sM1}:{sM1+1}]", nb, g)
        for T in (3, 4, 5, 6, 7):
            for q in range(4): F.add(f"v_cvt_pk_bf16_f32 v{reg(T,0,q)}, v{reg(T,0,2*q)}, v{reg(T,0,2*q+1)}", nb, g)
        for T in (0, 1, 2):
            for q in range(8):
                s.phi(reg(T, 0, q), tmp[ti % len(tmp)], g, nb); ti += 1
        for lt in range(2):
            for h in range(2):
                F.add(f"v_cvt_pk_bf16_f32 v{PQ+lt*6+h}, v{reg(2,lt,2*h)}, v{reg(2,lt,2*h+1)}", nb, g)
                F.add(f"v_cvt_pk_bf16_f32 v{PQ+lt*6+2+h}, v{reg(0,lt,2*h)}, v{reg(0,lt,2*h+1)}", nb, g)
                F.add(f"v_cvt_pk_bf16_f32 v{PQ+lt*6+4+h}, v{reg(1,lt,2*h)}, v{reg(1,lt,2*h+1)}", nb, g)
        kf = {0: reg(3, 0, 0), 1: reg(4, 0, 0), 2: reg(7, 0, 0)}
        vf = {0: reg(5, 0, 0), 1: reg(6, 0, 0), 2: reg(7, 0, 0)}
        dst = [reg(3, 1, 0), reg(4, 1, 0), reg(5, 1, 0), reg(6, 1, 0), reg(7, 1, 0), WIN + 8, WIN + 12, WIN + 16]
        for n, (kx, vy) in enumerate(KVPROD):
            F.add(f"v_mfma_f32_16x16x32_bf16 {R(dst[n],4)}, {R(kf[kx],4)}, {R(vf[vy],4)}, 0", nb, g)
        for n in range(8):
            F.add(f"ds_write_b128 v{WIN+n}, {R(dst[n],4)}", nb, g)
        F.add(Mark('kvs'), nb, g)
        t = vT2[0]
        F.add(f"v_min_u32 v{t}, 3056, v{vREC}", 0, g)
        F.add(f"v_add_u32 v{t}, {KVS}, v{t}", 0, g)
        for w in range(4):
            F.add(f"ds_read_b128 {R(WIN+4*w,4)}, v{t} offset:{w*3072}", 0, g, barrier_dep='kvs')
        for w in (1, 3):
            for q in range(4): F.add(f"v_add_f32 v{WIN+4*(w-1)+q}, v{WIN+4*(w-1)+q}, v{WIN+4*w+q}", 0, g)
        for q in range(4): F.add(f"v_add_f32 v{WIN+q}, v{WIN+q}, v{WIN+8+q}", 0, g)
        F.add(f"s_mul_i32 s{sT[0]}, s{sMT}, 3072", 0, g)
        F.add(f"s_add_u32 s{sT[0]}, s{sT[0]}, s{sREC}", 0, g)
        F.add(I(f"buffer_store_dwordx4 {R(WIN,4)}, v{vREC}, {srd(sWS)}, s{sT[0]} offen sc1", tag='rec'), 0, g)
        F.add(Mark('recdone', vm='rec'), 0, g)
        at = I(f"global_atomic_add v{vT2[1]}, v{vT2[2]}, s[20:21] sc1"); at.kind = 'vmx'
        F.add(Raw([f"s_cmp_lg_u32 s{sW}, 0", "s_cbranch_scc1 L_nosig",
                   f"s_lshl_b32 s{sT[1]}, s{sJ}, 2", f"v_mov_b32 v{vT2[1]}, s{sT[1]}", f"v_mov_b32 v{vT2[2]}, 1",
                   "s_mov_b64 exec, 1", at, "s_mov_b64 exec, -1", "L_nosig:"]), 0, g, barrier_dep='recdone')

    def gelu(s, b):
        F = s.F; nb = F.clock + 10; g = f'gelu{b}'
        half = (b == 4)
        A = ACC[b & 1]
        tmp = vT + vT2[3:6]; ti = 0
        for lt in range(4):
            for tau in range(1 if half else 2):
                G0 = A + ((tau * 2) * 4 + lt) * 4; U0 = G0 + 16
                for r in range(4):
                    G = G0 + r; U = U0 + r; t = tmp[ti % len(tmp)]; ti += 1
                    F.add(f"v_fma_f32 v{t}, v{G}, v{G}, s{sK}", nb, g)
                    F.add(f"v_mul_f32 v{U}, v{G}, v{U}", nb, g)
                    F.add(f"v_mul_f32 v{G}, v{t}, v{G}", nb, g)
                    if not s.alpha: F.add(f"v_mul_f32 v{G}, s{sC1}, v{G}", nb, g)
                    F.add(f"v_exp_f32 v{G}, v{G}", nb, g)
                    F.add(f"v_add_f32 v{G}, 1.0, v{G}", nb, g)
                    F.add(f"v_rcp_f32 v{G}, v{G}", nb, g)
                    F.add(f"v_mul_f32 v{U}, v{U}, v{G}", nb, g)
                D0 = A + lt * 4
                for h in range(2):
                    F.add(f"v_cvt_pk_bf16_f32 v{D0+tau*2+h}, v{U0+2*h}, v{U0+2*h+1}", nb, g)
            if not half:
                F.add(f"ds_write_b128 v{vHW[lt>>1]}, {R(A+lt*4,4)} offset:{b*16384+(lt&1)*1024}", nb, g)
            else:
                F.add(f"ds_write_b64 v{s.vHH[lt>>1]}, {R(A+lt*4,2)} offset:{(lt&1)*1024}", nb, g)

    def attn_finish(s):
        F = s.F; g = 'att'
        W = WIN
        F.add(f"s_lshl_b32 s{sT[1]}, s{sJ}, 2", 0, g)
        F.add(f"v_mov_b32 v{W+20}, s{sT[1]}", 0, g)
        F.add(I(f"global_load_dword v{W+21}, v{W+20}, s[20:21] sc1"), 0, g)
        F.add(Raw([f"v_readfirstlane_b32 s{sT[2]}, v{W+21}", "s_nop 0", f"s_cmp_lg_u32 s{sT[2]}, 16", "s_cbranch_scc1 L_poll", "L_pollback:"]), 0, g)
        s.tail += ["L_poll:", "s_mov_b32 s3, 0", "L_poll2:", "s_sleep 8", f"global_load_dword v{W+21}, v{W+20}, s[20:21] sc1", "s_waitcnt vmcnt(0)",
                   f"v_readfirstlane_b32 s{sT[2]}, v{W+21}", "s_add_u32 s3, s3, 1", "s_cmp_gt_u32 s3, 0x80000", "s_cbranch_scc1 L_pollback",
                   f"s_cmp_lg_u32 s{sT[2]}, 16", "s_cbranch_scc1 L_poll2", "s_branch L_pollback"]
        for bt in range(4):
            for q in range(4):
                m = bt * 4 + q
                F.add(f"s_add_u32 s{sT[3]}, s{sREC}, {m*3072}", 0, g)
                F.add(I(f"buffer_load_dwordx4 {R(W+4*q,4)}, v{vREC}, {srd(sWS)}, s{sT[3]} offen sc1"), 0, g)
            for q in (0, 2):
                for r in range(4): F.add(f"v_add_f32 v{W+4*q+r}, v{W+4*q+r}, v{W+4*q+4+r}", 0, g)
            for r in range(4):
                if bt == 0: F.add(f"v_add_f32 v{W+16+r}, v{W+r}, v{W+8+r}", 0, g)
                else:
                    F.add(f"v_add_f32 v{W+r}, v{W+r}, v{W+8+r}", 0, g)
                    F.add(f"v_add_f32 v{W+16+r}, v{W+16+r}, v{W+r}", 0, g)
        GA = TB3
        for r in range(4): F.add(f"v_and_b32 v{W+16+r}, v{W+16+r}, v{GA+10+(r>>1)}", 0, g)
        F.add(f"v_min_u32 v{W+20}, 3072+16, v{vREC}", 0, g)
        F.add(f"v_add_u32 v{W+20}, {SUMB}, v{W+20}", 0, g)
        F.add(f"ds_write_b128 v{W+20}, {R(W+16,4)}", 0, g)
        F.add(Mark('sum'), 0, g)
        OUT = W + 12; RC = W + 20
        def tile(lo, hi, f1, name):
            first = True
            if lo is not None: F.add(f"ds_read_b128 {R(W,4)}, v{GA+lo}", 0, g, barrier_dep='sum')
            F.add(f"ds_read_b128 {R(W+4,4)}, v{GA+hi}", 0, g, barrier_dep='sum')
            if f1 is not None: F.add(f"ds_read_b128 {R(W+8,4)}, v{GA+f1}", 0, g, barrier_dep='sum')
            for q in range(4):
                if lo is None and q < 2: F.add(f"v_mov_b32 v{W+q}, 0", 0, g)
                else: F.add(f"v_cvt_pk_bf16_f32 v{W+q}, v{W+2*q}, v{W+2*q+1}", 0, g)
            if f1 is not None:
                for q in range(2): F.add(f"v_cvt_pk_bf16_f32 v{W+8+q}, v{W+8+2*q}, v{W+8+2*q+1}", 0, g)
            for lt in range(2):
                F.add(f"v_mfma_f32_16x16x32_bf16 {R(OUT+4*lt,4)}, {R(W,4)}, {R(PQ+lt*6+2,4)}, 0", 0, g)
                if f1 is not None:
                    F.add(f"v_mfma_f32_16x16x16_bf16 {R(OUT+4*lt,4)}, {R(W+8,2)}, {R(PQ+lt*6,2)}, {R(OUT+4*lt,4)}", 0, g)
        tile(0, 1, 2, 'D')
        for lt in range(2):
            for h in range(2):
                F.add(f"v_add_f32 v{RC+2*lt+h}, s{sEPS}, v{OUT+4*lt+h}", 0, g)
                F.add(f"v_rcp_f32 v{RC+2*lt+h}, v{RC+2*lt+h}", 0, g)
                if s.alpha: F.add(f"v_mul_f32 v{RC+2*lt+h}, s{sA2}, v{RC+2*lt+h}", 0, g)
        ao = vT2[0]
        F.add(f"s_lshl_b32 s{sT[4]}, s{sW}, 13", 0, g)
        F.add(f"s_and_b32 s{sT[4]}, s{sT[4]}, 8192", 0, g)
        F.add(f"s_sub_u32 s{sT[4]}, {9*8192}, s{sT[4]}", 0, g)
        F.add(f"v_add_u32 v{ao}, s{sT[4]}, v{vHW[0]}", 0, g)
        def finish(which, off):
            for lt in range(2):
                for r in range(4):
                    o = OUT + 4 * lt + r
                    if which == 0: rc = RC + 2 * lt
                    elif which == 2 or r >= 2: rc = RC + 2 * lt + 1
                    else:
                        rc = W + 10 + lt
                        if r == 0: F.add(f"v_cndmask_b32 v{rc}, v{RC+2*lt+1}, v{RC+2*lt}, s[{sMG}:{sMG+1}]", 0, g)
                    F.add(f"v_mul_f32 v{o}, v{o}, v{rc}", 0, g)
                for h in range(2): F.add(f"v_cvt_pk_bf16_f32 v{OUT+4*lt+h}, v{OUT+4*lt+2*h}, v{OUT+4*lt+2*h+1}", 0, g)
                F.add(f"ds_write_b64 v{ao}, {R(OUT+4*lt,2)} offset:{off+lt*1024}", 0, g)
        tile(3, 4, None, 'T0'); finish(0, 0)
        tile(5, 6, 7, 'T1'); finish(1, 8)
        tile(None, 8, 9, 'T2'); finish(2, 8192)

    def p2_epilogue(s, nb_):
        F = s.F; nb = F.clock + 10; g = f'ep{nb_}'
        a0 = ACC[1] + (nb_ & 1) * 32
        F.add(f"s_add_u32 s{sT[nb_&1]}, s{sP}, {nb_*16384}", 0, g)
        for lt in range(4):
            b = a0 + lt * 8
            for q in range(4): F.add(f"v_cvt_pk_bf16_f32 v{b+q}, v{b+2*q}, v{b+2*q+1}", nb, g)
            F.add(I(f"buffer_store_dwordx4 {R(b,4)}, v{vHW[lt>>1]}, {srd(sWS)}, s{sT[nb_&1]} offen offset:{(lt&1)*1024} sc1", tag=f'p{nb_}'), nb, g)

    def tbl_load(s, grp, dst):
        off = grp * 1024
        if off < 4096: return [f"global_load_dwordx4 {R(dst,4)}, v{vT[2]}, s[{sTB}:{sTB+1}] offset:{off}"]
        raise

    def touches(s, lo, n):
        regs = {f"v{r}" for r in range(lo, lo + n)}
        return lambda it: bool((it['ins'].rd | it['ins'].wr) & regs)

    def kernelA(s):
        e = s.e
        s.make_stages(); s.make_backbone()
        e("s_cmp_ge_u32 s2, 256"); e("s_cbranch_scc1 L_endA")
        s.stamp()
        e("s_load_dwordx16 s[4:19], s[0:1], 0"); e("s_load_dwordx4 s[20:23], s[0:1], 64")
        e(f"s_getpc_b64 s[{sTB}:{sTB+1}]"); e("L_pc:")
        e(f"v_lshrrev_b32 v1, 6, v0"); e(f"v_readfirstlane_b32 s{sW}, v1")
        e("v_lshlrev_b32 v2, 7, v0")
        e(f"v_and_b32 v{vLane}, 63, v0")
        e(f"s_and_b32 s{sJ}, s2, 7"); e(f"s_lshl_b32 s{sJ}, s{sJ}, 1"); e(f"s_bfe_u32 s{sT[0]}, s2, 0x10003"); e(f"s_add_u32 s{sJ}, s{sJ}, s{sT[0]}")
        e(f"s_lshr_b32 s{sMT}, s2, 4")
        e(f"v_lshrrev_b32 v1, 3, v{vLane}"); e("v_mul_u32_u24 v1, 1152, v1"); e(f"v_and_b32 v3, 7, v{vLane}"); e("v_lshl_add_u32 v1, v3, 4, v1")
        e(f"s_lshl_b32 s{sT[1]}, s{sMT}, 2"); e(f"s_add_u32 s{sT[1]}, s{sT[1]}, s{sW}"); e(f"s_mul_i32 s{sT[1]}, s{sT[1]}, {32*1152}")
        e(Wait(alllg=True))
        e(f"s_mov_b32 s{sX}, s4"); e(f"s_mov_b32 s{sX+1}, s5"); e(f"s_mov_b32 s{sX+2}, {2048*1152}"); e(f"s_mov_b32 s{sX+3}, 0x20000")
        xreg = lambda a, b: ACC[0] + (a * 9 + b) * 4
        for a in range(4):
            if a: e(f"s_add_u32 s{sT[1]}, s{sT[1]}, 9216")
            for b in range(9):
                e(f"buffer_load_dwordx4 {R(xreg(a,b),4)}, v1, {srd(sX)}, s{sT[1]} offen offset:{b*128}")
        for (b, p, n) in ((sQKV, 6, 576 * 3456), (sWO, 8, 576 * 1152), (sWG, 12, 576 * 9216), (sWU, 14, 576 * 9216), (sWD, 16, 4608 * 1152)):
            e(f"s_sub_u32 s{b}, s{p}, 4096"); e(f"s_subb_u32 s{b+1}, s{p+1}, 0"); e(f"s_mov_b32 s{b+2}, {n+4096}"); e(f"s_mov_b32 s{b+3}, 0x20000")
        e(f"s_mov_b32 s{sWS}, s22"); e(f"s_mov_b32 s{sWS+1}, s23"); e(f"s_mov_b32 s{sWS+2}, {WSREC}"); e(f"s_mov_b32 s{sWS+3}, 0x20000")
        e(f"s_lshl_b32 s{sM0}, s{sW}, 12")
        odd = sT[0]
        e(f"s_mul_i32 s{sQ}, s{sJ}, 72"); e(f"s_and_b32 s{sQ}, s{sQ}, -16"); e(f"s_add_u32 s{sQ}, s{sQ}, 4096")
        e(f"v_lshrrev_b32 v3, 4, v{vLane}"); e(f"s_and_b32 s{sT[2]}, s{sW}, 1"); e(f"s_lshl_b32 s{sT[2]}, s{sT[2]}, 3")
        e(f"v_lshlrev_b32 v5, 1, v3"); e(f"v_or_b32 v5, s{sT[2]}, v5"); e(f"v_and_b32 v6, 15, v{vLane}"); e("v_xor_b32 v5, v5, v6"); e("v_min_u32 v5, 14, v5")
        e("v_mul_u32_u24 v6, 52, v5"); e("v_lshrrev_b32 v6, 8, v6"); e(f"v_mul_u32_u24 v6, {1152-80}, v6"); e("v_lshl_add_u32 v5, v5, 4, v6")
        e(f"s_lshl_b32 s{sT[2]}, s{sW}, 3"); e(f"v_add_u32 v3, s{sT[2]}, v3"); e("v_mul_u32_u24 v3, 3456, v3"); e(f"v_add_u32 v{vDMA0}, v3, v5")
        for si in range(4):
            for x in s.dma_items(si): e(x)
        e(f"v_min_u32 v5, L_codeend-L_pc, v2"); e(f"global_load_dword v6, v5, s[{sTB}:{sTB+1}]")
        e("v_add_u32 v2, 0x8000, v2"); e(f"v_min_u32 v5, L_codeend-L_pc, v2"); e(f"global_load_dword v7, v5, s[{sTB}:{sTB+1}]")
        e(f"s_lshl_b32 s{sT[2]}, s{odd}, 2"); e(f"s_add_u32 s{sT[2]}, s{sT[2]}, s{sW}"); e(f"s_mul_i32 s{sT[2]}, s{sT[2]}, {NGRP*1024}")
        e(f"s_add_u32 s{sT[2]}, s{sT[2]}, L_tbl-L_pc")
        e(f"s_add_u32 s{sTB}, s{sTB}, s{sT[2]}"); e(f"s_addc_u32 s{sTB+1}, s{sTB+1}, 0")
        e(f"v_lshlrev_b32 v3, 4, v{vLane}"); e("v_add_u32 v2, 4096, v3")
        for grp, dst in ((0, TB0), (5, TB5), (3, TB3), (4, TB3 + 4), (1, TB1), (2, TB2), (6, WIN), (7, WIN + 4)):
            e(f"global_load_dwordx4 {R(dst,4)}, v{3 if grp < 4 else 2}, s[{sTB}:{sTB+1}] offset:{(grp&3)*1024}")
        e(f"s_mul_i32 s{sG}, s{sJ}, 576"); e(f"s_add_u32 s{sG}, s{sG}, 4096")
        e(f"s_mul_i32 s{sD}, s{sJ}, {288*1152}"); e(f"s_add_u32 s{sD}, s{sD}, 4096")
        e(f"s_cmp_eq_u32 s{odd}, 0")
        e(f"s_cselect_b32 s{sT[2]}, 512, 0"); e(f"s_cselect_b32 s{sT[3]}, 0, 64"); e(f"s_cselect_b32 s{sT[4]}, {256*1152}, 0"); e(f"s_cselect_b32 s{sT[5]}, 0, {32*1152}")
        e(f"s_add_u32 s{sGh}, s{sG}, s{sT[2]}"); e(f"s_add_u32 s{sG}, s{sG}, s{sT[3]}"); e(f"s_add_u32 s{sDh}, s{sD}, s{sT[4]}"); e(f"s_add_u32 s{sD}, s{sD}, s{sT[5]}")
        e(f"s_mul_i32 s{sO}, s{sJ}, {36*1152}"); e(f"s_add_u32 s{sO}, s{sO}, 4096")
        e(f"s_mul_i32 s{sP}, s{sJ}, {PSTRIDE_J}"); e(f"s_mul_i32 s{sT[2]}, s{sMT}, {PSTRIDE_M}"); e(f"s_add_u32 s{sP}, s{sP}, s{sT[2]}"); e(f"s_add_u32 s{sP}, s{sP}, {PBASE-HB}")
        e(f"s_mul_i32 s{sREC}, s{sJ}, {16*3072}"); e(f"s_add_u32 s{sREC}, s{sREC}, {RECB}")
        c0 = -2.0 * math.sqrt(2.0 / math.pi) * math.log2(math.e); c1 = c0 * 0.044715
        al = -((-c1) ** (1.0 / 3.0)) if s.alpha else 1.0
        s.al = al
        e(f"s_mov_b32 s{sK}, {f32(c0/al if s.alpha else c0/c1)}"); e(f"s_mov_b32 s{sC1}, {f32(c1)}")
        e(f"s_mov_b32 s{sL2E}, {f32(math.log2(math.e)/al)}"); e(f"s_mov_b32 s{sIA}, {f32(1.0/al)}"); e(f"s_mov_b32 s{sEPS}, {f32(1e-6)}"); e(f"s_mov_b32 s{sA2}, {f32(al*al)}")
        e(f"s_mov_b32 s{sMK}, 0x000f000f"); e(f"s_mov_b32 s{sMK+1}, 0x000f000f"); e(f"s_mov_b32 s{sM1}, 0xff00ff00"); e(f"s_mov_b32 s{sM1+1}, 0xff00ff00")
        e(f"s_mov_b32 s{sMG}, 0xffff"); e(f"s_mov_b32 s{sMG+1}, 0")
        e(f"s_mov_b32 s{sT[2]}, 0x3f803f80")
        for q in range(4): e(f"v_mov_b32 v{PQ+q}, 0")
        e(f"v_mov_b32 v5, {ZQ}"); e(f"ds_write_b128 v5, {R(PQ,4)}")
        L = WIN + 8
        S1, S2, MU, RS = PQ + 4, PQ + 5, PQ + 6, PQ + 8
        for rnd in range(2):
            for a2 in range(2):
                a = rnd * 2 + a2
                e(f"v_mov_b32 v{S1}, 0"); e(f"v_mov_b32 v{S2}, 0")
                for b in range(9):
                    for q in range(4):
                        x = xreg(a, b) + q
                        e(f"v_dot2c_f32_bf16 v{S1}, s{sT[2]}, v{x}"); e(f"v_dot2c_f32_bf16 v{S2}, v{x}, v{x}")
                for m in ("quad_perm:[1,0,3,2]", "quad_perm:[2,3,0,1]", "row_half_mirror"):
                    e(f"v_add_f32_dpp v{S1}, v{S1}, v{S1} {m} row_mask:0xf bank_mask:0xf")
                    e(f"v_add_f32_dpp v{S2}, v{S2}, v{S2} {m} row_mask:0xf bank_mask:0xf")
                e(f"v_mul_f32 v{S1}, {f32(1/576)}, v{S1}"); e(f"v_mul_f32 v{S2}, {f32(1/576)}, v{S2}")
                e(f"v_fma_f32 v{S2}, -v{S1}, v{S1}, v{S2}"); e(f"v_max_f32 v{S2}, 0, v{S2}")
                e(f"v_cvt_pk_bf16_f32 v{S1}, v{S1}, v{S2}")
                e(f"v_lshlrev_b32 v{MU}, 16, v{S1}"); e(f"v_and_b32 v{S2}, 0xffff0000, v{S1}")
                e(f"v_add_f32 v{S2}, {f32(1e-5)}, v{S2}"); e(f"v_cvt_pk_bf16_f32 v{S2}, v{S2}, v{S2}"); e(f"v_and_b32 v{S2}, 0xffff0000, v{S2}")
                e(f"v_sqrt_f32 v{S2}, v{S2}"); e(f"v_cvt_pk_bf16_f32 v{S2}, v{S2}, v{S2}"); e(f"v_and_b32 v{S2}, 0xffff0000, v{S2}")
                e(f"v_rcp_f32 v{RS}, v{S2}")
                if s.alpha: e(f"v_mul_f32 v{RS}, {f32(al)}, v{RS}")
                e(f"v_mul_f32 v{MU}, v{MU}, v{RS}"); e(f"v_sub_f32 v{MU}, 0, v{MU}")
                if rnd == 1 and a2 == 0:
                    s.barrier()
                for b in range(9):
                    x = xreg(a, b); t = L + (b & 1) * 8
                    for q in range(4):
                        e(f"v_lshlrev_b32 v{t+2*q}, 16, v{x+q}"); e(f"v_and_b32 v{t+2*q+1}, 0xffff0000, v{x+q}")
                    for q in range(4):
                        e(f"v_pk_fma_f32 {R(t+2*q,2)}, {R(t+2*q,2)}, {R(RS,2)}, {R(MU,2)} op_sel_hi:[1,0,0]")
                    for q in range(4):
                        e(f"v_cvt_pk_bf16_f32 v{x+q}, v{t+2*q}, v{t+2*q+1}")
                    e(f"ds_write_b128 v{vXW}, {R(x,4)} offset:{b*2048+a2*128}")
            s.barrier()
            for own in range(2):
                for t in range(18):
                    e(f"ds_read_b128 {XN(own*2+rnd, t)}, v{TB5+own*2+(t&1)} offset:{t*1024}")
        s.stamp()
        def hooks(name):
            if name == "ph0_done":
                s.stamp()
                s.ph0_epilogue()
                F = s.F
                F.add(f"v_lshlrev_b32 v{vT2[3]}, 4, v{vLane}", 0, 'tb'); F.add(f"v_add_u32 v{vT2[3]}, 8192, v{vT2[3]}", 0, 'tb')
                for k in range(3):
                    F.add(f"global_load_dwordx4 {R(TB3+4*k,4)}, v{vT2[3]}, s[{sTB}:{sTB+1}] offset:{k*1024}", 0, 'tb')
            elif name.startswith("blk"):
                b = int(name[3])
                s.flush(s.touches(ACC[(b + 1) & 1], 64))
                if b == 1: s.attn_finish()
                s.gelu(b)
            elif name == "half_done":
                s.stamp()
                s.flush()
                s.vHH = (vDMA1, vDMAh)
                e(f"s_and_b32 s{sT[4]}, s{sW}, 1"); e(f"s_mul_i32 s{sT[4]}, s{sT[4]}, {8-8192}"); e(f"s_add_u32 s{sT[4]}, s{sT[4]}, 65536")
                for k in range(2): e(f"v_add_u32 v{s.vHH[k]}, s{sT[4]}, v{vHW[k]}")
                s.gelu(4); s.flush()
                e(f"s_and_b32 s{sT[4]}, s{sW}, 1"); e(f"s_lshl_b32 s{sT[4]}, s{sT[4]}, 13")
                for k in range(2):
                    e(f"v_subrev_u32 v{vT[k]}, s{sT[4]}, v{vHW[k]}"); e(f"v_add_u32 v{vT[2+k]}, 65536, v{vT[k]}")
                s.barrier()
                if s.dump == 'H': s.dumpH()
                for ks in range(11):
                    for lt in range(4):
                        b = vT[(lt >> 1) + (2 if ks >= 8 else 0)]
                        o = (ks % 8) * 8192 + (lt & 1) * 1024
                        if ks < 10: e(f"ds_read_b128 {XN(lt,ks)}, v{b} offset:{o}")
                        else: e(f"ds_read_b64 {XN(lt,ks,2)}, v{b} offset:{o}")
                s.stamp()
            elif name.startswith("nb"):
                n = int(name[2])
                s.flush(s.touches(ACC[1] + ((n + 1) & 1) * 32, 32))
                s.p2_epilogue(n)
            if not s.overlap: s.flush()
        s.run_backbone(hooks)
        s.flush()
        s.stamp()
        e(Wait(allvm=True))
        s.stamp()
        if s.stamps:
            e(f"s_cmp_lg_u32 s{sW}, 0"); e("s_cbranch_scc1 L_endA")
            e(f"s_add_u32 s22, s22, {STAMP}"); e("s_addc_u32 s23, s23, 0"); e("s_lshl_b32 s3, s2, 7"); e("v_mov_b32 v1, s3")
            for k in range(s.nst):
                e(f"v_mov_b32 v2, s{sST+2*k}"); e(f"v_mov_b32 v3, s{sST+2*k+1}"); e(f"global_store_dwordx2 v1, v[2:3], s[22:23] offset:{8*k}"); e("s_nop 1")
            e("s_waitcnt vmcnt(0)")
        e("L_endA:"); e("s_endpgm")

    def dumpH(s):
        e = s.e
        e(f"v_lshlrev_b32 v5, 4, v{vLane}"); e(f"s_mul_i32 s{sT[4]}, s{sW}, 22528"); e(f"v_add_u32 v5, s{sT[4]}, v5"); e(f"v_add_u32 v6, {HB}, v5")
        e(f"s_mul_i32 s{sT[4]}, s2, 90112"); e(f"s_add_u32 s{sT[4]}, s{sT[4]}, {64<<20}")
        e(f"s_mov_b32 s{sWS+2}, {128<<20}")
        for k in range(22):
            e(f"ds_read_b128 {R(ACC[0],4)}, v6 offset:{k*1024}")
            e(f"buffer_store_dwordx4 {R(ACC[0],4)}, v5, {srd(sWS)}, s{sT[4]} offen"); e(f"s_add_u32 s{sT[4]}, s{sT[4]}, 1024"); e("s_nop 4")
        e(f"s_mov_b32 s{sWS+2}, {WSREC}")

def kernelB(al, stamps):
    S = []; e = lambda x: S.append(I(x) if isinstance(x, str) else x)
    NWV = 9
    e("s_cmp_ge_u32 s2, 256"); e("s_cbranch_scc1 L_endB")
    if stamps: e("s_memrealtime s[44:45]")
    e("s_load_dwordx2 s[4:5], s[0:1], 0"); e("s_load_dwordx2 s[6:7], s[0:1], 56"); e("s_load_dwordx2 s[8:9], s[0:1], 72")
    e("v_lshrrev_b32 v1, 6, v0"); e("v_readfirstlane_b32 s3, v1"); e("v_and_b32 v0, 63, v0")
    e(f"s_mul_i32 s10, s2, {NWV}"); e("s_add_u32 s10, s10, s3")
    e("s_lshr_b32 s11, s2, 4")
    e("s_mul_i32 s12, s11, 144"); e("s_sub_u32 s12, s10, s12")
    e("s_and_b32 s13, s12, 7"); e("s_lshr_b32 s14, s12, 3")
    e("s_lshl_b32 s15, s10, 10"); e(f"s_add_u32 s15, s15, {PBASE}")
    e("v_lshlrev_b32 v2, 4, v0")
    e("s_lshl_b32 s16, s11, 3"); e("s_add_u32 s16, s16, s13"); e(f"s_mul_i32 s16, s16, {16*1152}"); e("s_lshl_b32 s17, s14, 6"); e("s_add_u32 s16, s16, s17")
    e("v_and_b32 v3, 15, v0"); e("v_mul_u32_u24 v3, 1152, v3"); e("v_lshrrev_b32 v4, 4, v0")
    e("v_lshl_add_u32 v5, v4, 3, v3")
    e("v_and_b32 v6, 1, v4"); e("v_lshrrev_b32 v4, 1, v4"); e("v_lshl_add_u32 v3, v6, 5, v3"); e("v_lshl_add_u32 v3, v4, 4, v3")
    e(Wait(alllg=True))
    e("s_mov_b32 s20, s8"); e("s_mov_b32 s21, s9"); e(f"s_mov_b32 s22, {WSREC}"); e("s_mov_b32 s23, 0x20000")
    e("s_mov_b32 s24, s4"); e("s_mov_b32 s25, s5"); e(f"s_mov_b32 s26, {2048*1152}"); e("s_mov_b32 s27, 0x20000")
    e("s_mov_b32 s28, s6"); e("s_mov_b32 s29, s7"); e(f"s_mov_b32 s30, {2048*1152}"); e("s_mov_b32 s31, 0x20000")
    for i in range(16):
        e(f"buffer_load_dwordx4 {R(24+4*i,4)}, v2, s[20:23], s15 offen")
        if i < 15: e(f"s_add_u32 s15, s15, {PSTRIDE_J}")
    e("buffer_load_dwordx2 v[20:21], v5, s[24:27], s16 offen"); e("buffer_load_dwordx2 v[22:23], v5, s[24:27], s16 offen offset:32")
    for i in range(16):
        for q in range(4):
            x = 24 + 4 * i + q
            if i == 0:
                e(f"v_lshlrev_b32 v{8+2*q}, 16, v{x}"); e(f"v_and_b32 v{9+2*q}, 0xffff0000, v{x}")
            else:
                t = 16 + 2 * (q & 1)
                e(f"v_lshlrev_b32 v{t}, 16, v{x}"); e(f"v_and_b32 v{t+1}, 0xffff0000, v{x}")
                e(f"v_pk_add_f32 {R(8+2*q,2)}, {R(8+2*q,2)}, {R(t,2)}")
    e(f"s_mov_b32 s18, {f32(1.0/(al*al))}")
    for q in range(4):
        e(f"v_lshlrev_b32 v16, 16, v{20+q}"); e(f"v_and_b32 v17, 0xffff0000, v{20+q}")
        e(f"v_fma_f32 v{8+2*q}, v{8+2*q}, s18, v16"); e(f"v_fma_f32 v{9+2*q}, v{9+2*q}, s18, v17")
        e(f"v_cvt_pk_bf16_f32 v{24+q}, v{8+2*q}, v{9+2*q}")
    e("v_permlane16_swap_b32 v24, v26"); e("v_permlane16_swap_b32 v25, v27")
    e("buffer_store_dwordx4 v[24:27], v3, s[28:31], s16 offen")
    if stamps:
        e("s_waitcnt vmcnt(0)"); e("s_memrealtime s[46:47]"); e("s_waitcnt lgkmcnt(0)")
        e("s_cmp_lg_u32 s3, 0"); e("s_cbranch_scc1 L_endB")
        e(f"s_add_u32 s8, s8, {STAMP+0x100000}"); e("s_addc_u32 s9, s9, 0"); e("s_lshl_b32 s17, s2, 4"); e("v_mov_b32 v1, s17")
        e("v_mov_b32 v4, s44"); e("v_mov_b32 v5, s45"); e("v_mov_b32 v6, s46"); e("v_mov_b32 v7, s47")
        e("global_store_dwordx4 v1, v[4:7], s[8:9]"); e("s_waitcnt vmcnt(0)")
    e("L_endB:"); e("s_endpgm")
    return S

def kd(name, nv, acc, ns):
    return f""".p2align 6
.amdhsa_kernel {name}
  .amdhsa_next_free_vgpr {nv}
  .amdhsa_next_free_sgpr {ns}
  .amdhsa_accum_offset {acc}
  .amdhsa_group_segment_fixed_size 0
  .amdhsa_kernarg_size 80
  .amdhsa_user_sgpr_count 2
  .amdhsa_user_sgpr_kernarg_segment_ptr 1
  .amdhsa_system_sgpr_workgroup_id_x 1
.end_amdhsa_kernel
"""

def generate(**kw):
    g = Gen(**kw); g.kernelA()
    A, auto, nn = postpass(g.S)
    B, _, _ = postpass(kernelB(g.al, g.stamps))
    nm = sum(1 for x in A if x.kind == 'mfma')
    print(f"kernelA: {len(A)} instrs, {nm} mfma, auto waits {auto}, nops {nn}, extra barriers {g.nextra}, flushed {g.flushlog}", file=sys.stderr)
    o = [HDR.rstrip()]
    o.append("; @launch kernel=ffn_attn_main_kernel grid=(256,1,1) block=(256,1,1) lds=163840")
    o.append("; @launch kernel=reduce_out_kernel grid=(256,1,1) block=(576,1,1) lds=0")
    o.append('.amdgcn_target "amdgcn-amd-amdhsa--gfx950"'); o.append(".text")
    o += [".globl ffn_attn_main_kernel", ".p2align 8", ".type ffn_attn_main_kernel,@function", "ffn_attn_main_kernel:"]
    o += [("    " + x.text if x.kind != 'label' else x.text) for x in A if x.text]
    o += [("    " + x if not x.endswith(":") else x) for x in g.tail]
    o.append("L_codeend:")
    o += [".globl reduce_out_kernel", ".p2align 8", ".type reduce_out_kernel,@function", "reduce_out_kernel:"]
    o += [("    " + x.text if x.kind != 'label' else x.text) for x in B if x.text]
    o += [".p2align 8", ".type L_tbl,@object", "L_tbl:"]
    T = build_table()
    for var in T:
        for G in var:
            for l in G: o.append(".long " + ", ".join("0x%x" % v for v in l))
    o.append(f".size L_tbl, {8*NGRP*1024}")
    o.append('.section .rodata,"a"')
    o.append(kd("ffn_attn_main_kernel", 512, 256, 102)); o.append(kd("reduce_out_kernel", 88, 88, 48))
    return "\n".join(o) + "\n"

if __name__ == "__main__":
    import argparse
    ap = argparse.ArgumentParser()
    ap.add_argument("-o", default="k.s")
    ap.add_argument("--alpha", action="store_true"); ap.add_argument("--chain", type=int, default=1)
    ap.add_argument("--stamps", action="store_true"); ap.add_argument("--dump"); ap.add_argument("--nooverlap", action="store_true")
    ap.add_argument("-D", type=int, default=4)
    a = ap.parse_args()
    open(a.o, "w").write(generate(alpha=a.alpha, chain=a.chain, stamps=a.stamps, dump=a.dump, overlap=not a.nooverlap, D=a.D))
```

```python
import re

def _regs(tok):
    tok = tok.strip()
    neg = tok.lstrip('-')
    if neg.startswith('abs(') and neg.endswith(')'): neg = neg[4:-1]
    if neg.startswith('|') and neg.endswith('|'): neg = neg[1:-1]
    m = re.fullmatch(r'([vas])\[(\d+):(\d+)\]', neg)
    if m: return [f"{m.group(1)}{i}" for i in range(int(m.group(2)), int(m.group(3)) + 1)]
    m = re.fullmatch(r'([vas])(\d+)', neg)
    if m: return [neg]
    if neg in ('vcc', 'exec', 'm0', 'scc'): return [neg]
    if neg in ('vcc_lo', 'vcc_hi'): return ['vcc']
    if neg in ('exec_lo', 'exec_hi'): return ['exec']
    return []

TRANS = ('v_exp_f32', 'v_log_f32', 'v_rcp_f32', 'v_rsq_f32', 'v_sqrt_f32', 'v_sin_f32', 'v_cos_f32')

class I:
    __slots__ = ('text', 'op', 'kind', 'rd', 'wr', 'tag', 'mf', 'extra', 'isdot', 'isdpp', 'isperm', 'wide')
    def __init__(self, text, tag=None):
        self.text = text.strip(); self.tag = tag; self.extra = None
        self.mf = None; self.isdot = False; self.isdpp = False; self.isperm = False; self.wide = False
        t = self.text.split(';')[0].strip()
        if t.endswith(':') or t.startswith('.') or t == '':
            self.op = 'label'; self.kind = 'label'; self.rd = set(); self.wr = set(); return
        sp = t.split(None, 1)
        op = sp[0]; rest = sp[1] if len(sp) > 1 else ''
        self.op = op
        parts = [p.strip() for p in rest.split(',')] if rest else []
        ops = []; mods = []
        mm = re.search(r'\s(quad_perm|row_shr|row_shl|row_ror|row_mirror|row_half_mirror|row_bcast|row_newbcast|op_sel|op_sel_hi|neg_lo|neg_hi|offset|offen|lds|sc0|sc1|nt|clamp|mul:|div:|dst_sel|offset0|cbsz|abid|blgp)\b', ' ' + rest)
        if mm:
            cut = mm.start()
            modstr = (' ' + rest)[cut:]
            rest2 = (' ' + rest)[:cut]
        else:
            modstr = ''; rest2 = rest
        ops = [p.strip() for p in rest2.split(',') if p.strip()]
        R = [_regs(o) for o in ops]
        rd = set(); wr = set()
        base = op.replace('_e32', '').replace('_e64', '').replace('_dpp', '')
        if op.startswith('v_mfma'):
            self.kind = 'mfma'
            wr |= set(R[0]); rd |= set(R[1]) | set(R[2]) | set(R[3])
            self.mf = (R[0], R[1], R[2], R[3])
        elif op.startswith('ds_read') or op.startswith('ds_bpermute') or op.startswith('ds_swizzle'):
            self.kind = 'dsr'; wr |= set(R[0])
            for r in R[1:]: rd |= set(r)
        elif op.startswith('ds_'):
            self.kind = 'dsw'
            for r in R: rd |= set(r)
        elif op.startswith('buffer_load') or op.startswith('global_load'):
            self.kind = 'vm'
            if ' lds' in modstr or op.startswith('global_load_lds'):
                for r in R: rd |= set(r)
                rd.add('m0'); self.extra = 'dma'
            else:
                wr |= set(R[0])
                for r in R[1:]: rd |= set(r)
        elif op.startswith('buffer_store') or op.startswith('global_store'):
            self.kind = 'vm'; self.extra = 'store'
            for r in R: rd |= set(r)
            if op.endswith('x4') or op.endswith('x3'):
                self.wide = True
                self.mf = R[0] if op.startswith('buffer') else R[1]
        elif op.startswith('global_atomic') or op.startswith('buffer_atomic'):
            self.kind = 'vm'; self.extra = 'atomic'
            if ' sc0' in modstr and op.startswith('global'):
                wr |= set(R[0])
                for r in R[1:]: rd |= set(r)
            else:
                for r in R: rd |= set(r)
        elif op.startswith('buffer_wbl2') or op.startswith('buffer_inv'):
            self.kind = 'vm'; self.extra = 'cache'
        elif op.startswith('s_load') or op.startswith('s_memtime') or op.startswith('s_memrealtime'):
            self.kind = 'smem'; wr |= set(R[0])
            for r in R[1:]: rd |= set(r)
        elif op in ('s_waitcnt', 's_nop', 's_barrier', 's_endpgm', 's_setprio', 's_sleep') or op.startswith('s_cbranch') or op == 's_branch':
            self.kind = 'sctl'
            if op.startswith('s_cbranch_scc'): rd.add('scc')
            if op.startswith('s_cbranch_vcc'): rd.add('vcc')
            if op.startswith('s_cbranch_exec'): rd.add('exec')
        elif op.startswith('s_'):
            self.kind = 'salu'
            if op.startswith('s_cmp') or op.startswith('s_bitcmp'):
                for r in R: rd |= set(r)
                wr.add('scc')
            else:
                wr |= set(R[0])
                for r in R[1:]: rd |= set(r)
                if op.startswith(('s_cselect', 's_addc', 's_subb', 's_cmov')): rd.add('scc')
                if not op.startswith(('s_mov', 's_cselect', 's_mul', 's_getpc', 's_getreg', 's_cmov')): wr.add('scc')
                if 'saveexec' in op: rd.add('exec'); wr.add('exec')
                if op.startswith(('s_addk', 's_mulk')): rd |= set(R[0])
        elif op.startswith('v_'):
            self.kind = 'trans' if base in TRANS else 'valu'
            if op.startswith('v_cmp'):
                wr |= set(R[0])
                for r in R[1:]: rd |= set(r)
                if op.startswith('v_cmpx'): wr.add('exec')
            elif op.startswith('v_permlane') and 'swap' in op:
                rd |= set(R[0]) | set(R[1]); wr |= set(R[0]) | set(R[1]); self.isperm = True
            elif base in ('v_add_co_u32', 'v_sub_co_u32', 'v_addc_co_u32', 'v_subb_co_u32', 'v_mad_u64_u32'):
                wr |= set(R[0]) | set(R[1])
                for r in R[2:]: rd |= set(r)
            else:
                wr |= set(R[0])
                for r in R[1:]: rd |= set(r)
                if base in ('v_fmac_f32', 'v_dot2c_f32_bf16', 'v_writelane_b32'): rd |= set(R[0])
                if base.startswith('v_dot'): self.isdot = True
                if '_dpp' in op or 'quad_perm' in modstr or 'row_' in modstr:
                    self.isdpp = True; rd |= set(R[0])
        else:
            raise ValueError("unknown op " + text)
        self.rd = rd; self.wr = wr
    def __repr__(self): return self.text

class Wait:
    kind = 'wait'
    def __init__(self, vm=None, lg=None, regs=None, allvm=False, alllg=False):
        self.vm = vm; self.lg = lg; self.regs = set(regs or []); self.allvm = allvm; self.alllg = alllg
        self.rd = set(); self.wr = set(); self.text = 'WAIT'; self.op = 'wait'; self.tag = None
        self.isdot = False; self.isdpp = False; self.isperm = False; self.wide = False

class Reset:
    kind = 'label'; text = ''; op = 'label'
    rd = set(); wr = set(); tag = None

STRICT_SMEM = False
def isvec(r): return r[0] in 'va' and r[1:].isdigit()

def postpass(stream, verbose=False):
    out = []
    vmq = []
    lgq = []
    smem_pending = set()
    auto = 0
    def emit_wait(nvm, nlg):
        parts = []
        if nvm is not None:
            assert nvm <= 63, nvm
            parts.append(f"vmcnt({nvm})"); del vmq[:len(vmq) - nvm]
        if nlg is not None:
            n = min(nlg, 15)
            parts.append(f"lgkmcnt({n})"); del lgq[:len(lgq) - n]
            if n == 0: smem_pending.clear()
        if parts: out.append(I("s_waitcnt " + " ".join(parts)))
    def need(q, pred):
        idx = -1
        for i, ent in enumerate(q):
            if pred(ent): idx = i
        return None if idx < 0 else len(q) - 1 - idx
    for ins in stream:
        if ins.kind == 'wait':
            nvm = nlg = None
            if ins.allvm and vmq: nvm = 0
            if ins.alllg and (lgq or smem_pending): nlg = 0
            tv = ins.vm if isinstance(ins.vm, (list, tuple, set)) else ([ins.vm] if ins.vm is not None else [])
            tl = ins.lg if isinstance(ins.lg, (list, tuple, set)) else ([ins.lg] if ins.lg is not None else [])
            a = need(vmq, lambda e: e[0] in tv or (e[1] & ins.regs))
            if a is not None: nvm = a if nvm is None else min(nvm, a)
            b = need(lgq, lambda e: e[0] in tl or (e[1] & ins.regs))
            if b is not None: nlg = b if nlg is None else min(nlg, b)
            if nlg is not None and smem_pending and STRICT_SMEM: nlg = 0
            if nvm is not None and nvm > 63: nvm = 63
            emit_wait(nvm, nlg)
            continue
        if ins.kind == 'label':
            out.append(ins); continue
        if ins.op == 's_waitcnt':
            m = re.search(r'vmcnt\((\d+)\)', ins.text)
            if m: del vmq[:max(0, len(vmq) - int(m.group(1)))]
            m = re.search(r'lgkmcnt\((\d+)\)', ins.text)
            if m:
                del lgq[:max(0, len(lgq) - int(m.group(1)))]
                if int(m.group(1)) == 0: smem_pending.clear()
            out.append(ins); continue
        touched = ins.rd | ins.wr
        a = need(vmq, lambda e: e[1] & (ins.rd if ins.kind == 'vm' else touched))
        b = need(lgq, lambda e: e[1] & touched)
        if touched & smem_pending: b = 0
        if b is not None and smem_pending and STRICT_SMEM: b = 0
        if a is not None or b is not None:
            auto += 1
            if verbose: print("auto wait before", ins.text, a, b)
            emit_wait(a, b)
        if ins.kind == 'vm':
            if len(vmq) >= 63:
                emit_wait(62, None)
            vmq.append((ins.tag, set(ins.wr)))
        elif ins.kind in ('dsr', 'dsw'):
            lgq.append((ins.tag, set(ins.wr)))
        elif ins.kind == 'smem':
            smem_pending |= ins.wr
        out.append(ins)
    out2, nn = hazards(out)
    return out2, auto, nn

def states(ins):
    if ins.kind == 'label': return 0
    if ins.op == 's_nop': return int(ins.text.split()[1], 0) + 1
    return 1

def passes(ins):
    if '32x32' in ins.op: return 8
    return 4

def required(p, c):
    need = 0
    pv = p.kind in ('valu', 'trans')
    cv = c.kind in ('valu', 'trans')
    if pv:
        vw = {r for r in p.wr if isvec(r)}
        sw = {r for r in p.wr if not isvec(r)}
        if c.kind == 'mfma' and (vw & c.rd): need = max(need, 3 if p.isdot else 2)
        if c.kind == 'mfma' and 'exec' in sw: need = max(need, 4)
        if cv:
            if p.kind == 'trans' and c.kind != 'trans' and (vw & c.rd): need = max(need, 1)
            if c.isdpp and (vw & c.rd): need = max(need, 2)
            if c.isdpp and 'exec' in sw: need = max(need, 5)
            if c.isperm and (vw & c.rd): need = max(need, 2)
            if c.op.startswith(('v_readfirstlane', 'v_readlane')) and (vw & c.rd): need = max(need, 1)
            if c.op.startswith(('v_readfirstlane', 'v_readlane', 'v_writelane', 'v_permlane')) and 'exec' in sw: need = max(need, 4)
            if sw & c.rd: need = max(need, 4 if c.op.startswith(('v_readlane', 'v_writelane')) else 2)
            if p.isdot and (vw & (c.rd | c.wr)):
                same = (p.op == c.op)
                ops = [o.strip() for o in c.text.split(None, 1)[1].split(',')]
                ab = set(_regs(ops[1])) | set(_regs(ops[2]))
                if not same or (vw & ab): need = max(need, 3)
        if p.isdot and c.kind in ('vm', 'dsw', 'dsr') and (vw & c.rd): need = max(need, 3)
        if c.kind in ('vm', 'vmx') and (sw & c.rd): need = max(need, 5)
        if c.kind in ('salu', 'sctl', 'smem') and (sw & c.rd): need = max(need, 1)
    if p.kind == 'mfma':
        D = set(p.mf[0]); n = passes(p)
        tabAB = {4: 8, 8: 12}[n]; tabC = {4: 6, 8: 10}[n]; war = {4: 3, 8: 7}[n]
        if c.kind == 'mfma':
            if D & (set(c.mf[1]) | set(c.mf[2])): need = max(need, tabAB)
            if D & set(c.mf[3]):
                if not (c.mf[3] == p.mf[0] and c.op == p.op): need = max(need, tabC)
                elif '16x16x16' in p.op: need = max(need, 2)
            elif D & set(c.mf[0]):
                need = max(need, tabC)
        elif cv or c.kind in ('vm', 'vmx', 'dsr', 'dsw'):
            if D & (c.rd | c.wr): need = max(need, tabAB)
            if cv and (set(p.mf[3]) & c.wr): need = max(need, war)
    if p.kind == 'salu' and 'm0' in p.wr and c.kind == 'vm' and 'm0' in c.rd: need = max(need, 1)
    if p.kind == 'vm' and p.wide and (set(p.mf) & c.wr): need = max(need, 2)
    if p.kind == 'dsw' and cv and False: pass
    return need

def hazards(stream):
    out = []; nn = 0
    for c in stream:
        if c.kind != 'label':
            dist = 0; pad = 0
            for p in reversed(out):
                if dist >= 20: break
                if p.kind != 'label':
                    r = required(p, c)
                    if r > dist: pad = max(pad, r - dist)
                dist += states(p)
            if pad:
                while pad > 0:
                    k = min(pad, 16); out.append(I(f"s_nop {k-1}")); pad -= k; nn += 1
        out.append(c)
    return out, nn

SCC = {'scc'}
class Filler:
    def __init__(self):
        self.items = []
        self.vmlat = 200
        self.clock = 0
    def add(self, ins, notbefore=0, group=None, after=None, barrier_dep=None):
        if isinstance(ins, str): ins = I(ins)
        assert 'scc' not in ins.rd or ins.op == 'raw', ins.text
        it = dict(ins=ins, deps=[], at=None, nb=notbefore, group=group, gate=barrier_dep)
        for p in self.items:
            q = p['ins']
            raw = (q.wr & ins.rd) - SCC; waw = (q.wr & ins.wr) - SCC; war = (q.rd & ins.wr) - SCC
            mem = (q.kind in ('dsr', 'dsw', 'vm', 'wait', 'sctl', 'label') and ins.kind in ('dsr', 'dsw', 'vm', 'wait', 'sctl', 'label') and p['group'] == group)
            if raw or waw or war or mem:
                lat = 1
                if raw:
                    if q.kind == 'trans': lat = 3
                    elif q.kind == 'mfma': lat = 9
                    elif q.kind == 'dsr': lat = 24
                    elif q.kind == 'vm': lat = self.vmlat
                    elif q.isdot: lat = 4
                    elif ins.kind == 'mfma' or ins.isdpp or ins.isperm or any(not isvec(r) for r in raw): lat = 3
                    else: lat = 2
                elif q.kind == 'mfma': lat = 9
                elif q.kind == 'vm' and q.wide: lat = 3
                it['deps'].append((p, lat))
        if after:
            for p in after: it['deps'].append((p, 1))
        self.items.append(it)
        return it
    def ready(self, it, gates):
        if it['nb'] > self.clock: return False
        if it['gate'] is not None and it['gate'] not in gates: return False
        for p, lat in it['deps']:
            if p['at'] is None or p['at'] + lat > self.clock: return False
        return True
    def take(self, it):
        it['at'] = self.clock
        self.items.remove(it)
        return it['ins']
```

```python
import sys, math, struct
from asmlib import *

KN = "parallel_sum__linear_attn_block__geglu_ffn__prompt"
HDR = open("cdna_kernels/" + KN + ".s.ref").read().split("; Override launch")[0]

def f32(x): return "0x%08x" % struct.unpack("<I", struct.pack("<f", x))[0]

RING = 0; HB = 65536; OB = HB + 73728; MISC = OB + 16384
KVS = OB
KVT = OB + 12288
SUMB = MISC
ZQ = MISC + 3072
W10 = MISC + 3104
PBASE = 1 << 20
PSTRIDE_J = 2359296; PSTRIDE_M = 147456
RECB = 48 << 20
FLAGB = 56 << 20
WSREC = 64 << 20
STAMP = 128 << 20

vLane = 0
vT = [1, 2, 3, 4]
vDMA0 = 4
TB0 = 8;  vDMA1, vDMAh, vDMA2, vXW = 8, 9, 10, 11
TB1 = 12; vTR1 = (12, 13); vTRh = 14; vREC = 15
TB2 = 16; vTR2 = (16, 17); vHW = (18, 19)
TB3 = 20
TB5 = 28
PQ = 32
XV = 44
ACC = (76, 140)
FR = 204; NF = 6
WIN = 228
vT2 = [5, 6, 7, 252, 253, 254, 255]
sX, sQKV, sWO, sWG, sWU, sWD, sWS = 24, 28, 32, 36, 40, 44, 48
sW, sJ, sMT, sM0, sQ, sG, sGh, sD, sDh, sO, sP, sREC = 52, 53, 54, 55, 56, 57, 58, 59, 60, 61, 62, 63
sK, sC1, sL2E, sIA, sEPS, sA2 = 64, 69, 66, 67, 68, 69
sSO = [70, 71, 72, 73]
sMK, sM1, sMG = 74, 76, 78
sPG, sPGh, sPD, sPO, sPT = 0, 1, 3, 10, 11
sSPIN, sFLG, sSIG, sOUT = 16, 17, 56, 28
sRB, sXB, sFB = 64, 66, 68
vFP = 14
sH0, sH1 = 3, 56
sROT, sXO = 65, 73
vPFg, vPFd = 6, 7
vHR = (12, 13, 6, 7); vHH = (8, 11); vK16 = 9
sTB = 80
sT = [82, 83, 84, 85, 86, 87]
STP = [88, 90, 92, 94, 96, 98, 100, 4, 6, 8, 12, 14]

def R(b, n, k='v'): return f"{k}[{b}:{b+n-1}]" if n > 1 else f"{k}{b}"
def srd(b): return f"s[{b}:{b+3}]"
def XN(lt, t, n=4):
    return R((lt * 16 + t) * 4, n, 'a') if t < 16 else R(XV + (lt * 2 + t - 16) * 4, n)

def build_table():
    G = [[None] * 64 for _ in range(8)]
    for l in range(64):
        g = l >> 4; i = l & 15
        def kvaddr(kx, vy):
            if vy == 0: row = i
            elif vy == 1: row = 16 + i
            else: row = 28 + i if 4 <= i <= 9 else None
            quad = g if kx == 0 else (4 + g if kx == 1 else (8 if g == 0 else None))
            if row is None or quad is None: return KVS + 3072 + l * 16
            head = (1 if row >= 18 else 0) if row < 36 else row - 36
            qq = quad - 4 * head
            if not 0 <= qq <= 4: return KVS + 3072 + l * 16
            return KVS + (row * 5 + qq) * 16
        ka = [kvaddr(kx, vy) for kx, vy in KVPROD]
        G[0][l] = ka[:4]; G[1][l] = ka[4:]
        def ga(row, quad):
            if row is None: return ZQ
            head = (1 if row >= 18 else 0) if row < 36 else row - 36
            qq = quad - 4 * head
            if not 0 <= qq <= 4: return ZQ
            return SUMB + (row * 5 + qq) * 16
        rowD = 36 + (i & 1); row0 = i; row1 = 16 + i; row2 = 32 + i if i < 4 else None
        f1 = lambda row: ga(row, 8) if g == 0 else ZQ
        G[2][l] = [ga(rowD, g), ga(rowD, 4 + g), f1(rowD), ga(row0, g)]
        G[3][l] = [ga(row0, 4 + g), ga(row1, g), ga(row1, 4 + g), f1(row1)]
        for w in range(4):
            n = 48 * w + l
            row_n, qq_n = divmod(n, 5)
            head_n = (1 if row_n >= 18 else 0) if row_n < 36 else row_n - 36
            mlo = 0 if (head_n == 1 and qq_n == 0) else 0xffffffff
            mhi = 0 if (head_n == 0 and qq_n == 4) else 0xffffffff
            G[4 + w][l] = [ga(row2, 4 + g), f1(row2), mlo, mhi]
    return G
KVPROD = [(0, 0), (0, 1), (0, 2), (1, 0), (1, 1), (1, 2), (2, 1), (2, 2)]
NGRP = 8

class Mark:
    kind = 'label'; op = 'label'; text = ''; tag = None; isdot = False; isdpp = False; isperm = False; wide = False
    def __init__(self, gate, vm=None): self.gate = gate; self.vm = vm; self.rd = set(); self.wr = set()

class Raw:
    kind = 'sctl'; op = 'raw'; tag = None; isdot = False; isdpp = False; isperm = False; wide = False
    def __init__(self, ins, rd=(), wr=()):
        self.ins = [I(x) if isinstance(x, str) else x for x in ins]; self.text = 'RAW'
        self.rd = set(rd); self.wr = set(wr)
        for x in self.ins: self.rd |= x.rd; self.wr |= x.wr

class Gen:
    def __init__(s, alpha=False, chain=1, stamps=False, D=4, dump=None, overlap=True, **kw):
        s.alpha = alpha; s.chain = chain; s.stamps = stamps; s.D = D; s.dump = dump; s.overlap = overlap
        s.S = []
        s.F = Filler()
        s.gates = set(); s.pending_marks = []
        s.vmorder = []
        s.nst = 0; s.stnames = []
        s.tail = []
        s.nextra = 0; s.flushlog = []; s.late = 0; s.bdelay = 5; s.ddslack = 4; s.xfirst = 1; s.bgrate = 1; s.jit0 = 2; s.wpf = 1; s.npre = 1; s.cyc = 0; s.rb4 = ACC[0] + 32; s.pdelay = 250; s.drainwork = 180; s.flagit = {}; s.oflag = ''; s.r0at = 4; s.r4at = 6; s.stcl = 0; s.w64 = 1; s.qpfa = 2; s.wrate = 3; s.xn0 = 0; s.pst = 0; s.rot = 3; s.popN = 12; s.popM = 1; s.dlm = 44; s.defth = 3; s.novf = 0; s.NO = 2; s.stsp = 14; s.dmagap = 7; s.fvmgap = 2; s.fvmreset = 0; s.atts = 26; s.pfoff = -2; s.pfd = 20; s.touch = 0
        for k, v in kw.items(): setattr(s, k, v)
    def e(s, x, tag=None):
        ins = I(x, tag) if isinstance(x, str) else x
        if isinstance(ins, Raw):
            for y in ins.ins: s.e(y)
            return
        if isinstance(ins, Mark):
            s.pending_marks.append(ins); return
        if ins.kind == 'vm': s.vmorder.append(ins.tag)
        s.S.append(ins)
    def pstamp(s):
        if s.stamps and s.pst == 1: s.stamp('p', True, True)
    def stamp(s, name='', nowait=False, pro=False):
        if s.stamps and (bool(s.pst) == pro or (s.nst == 0 and s.pst < 2)) and s.nst < 12:
            r = STP[s.nst]; s.e(f"{'s_memtime' if s.cyc else 's_memrealtime'} s[{r}:{r+1}]"); s.nst += 1; s.stnames.append(name)
            if not nowait: s.e(Wait(alllg=True))
    def barrier(s, vmtag=None):
        s.e(Wait(vm=vmtag, alllg=True)); s.e("s_barrier")
        cov = -1
        if vmtag is not None:
            for k, t in enumerate(s.vmorder):
                if t == vmtag: cov = k
        keep = []
        for m in s.pending_marks:
            ok = True
            if m.vm is not None:
                last = max(k for k, t in enumerate(s.vmorder) if t == m.vm)
                ok = last <= cov
            if ok: s.gates.add(m.gate)
            else: keep.append(m)
        s.pending_marks = keep

    def make_stages(s):
        st = []
        for k in range(9):
            st.append([(sQKV, vDMA0, sQ, (64 * k + 32 * (q >> 1) + 4 * (q & 1)) * 3456) for q in range(4)])
        for b in range(4):
            for k in range(9):
                st.append([((sWG, sWU)[q & 1], vDMA1, sG, b * 128 + (64 * k + 32 * (q >> 1)) * 9216) for q in range(4)])
        for k in range(5):
            st.append([((sWG, sWU)[q & 1], vDMAh, sGh, (128 * k + 64 * (q >> 1)) * 9216) for q in range(4 if k < 4 else 2)])
        NO = s.NO
        seg = []
        early = [0, 1, 2, 3, 4, 5]
        for nb in range(NO): seg.append((nb, early))
        for nb in range(NO): seg.append((nb, [6, 7]))
        for nb in range(NO): seg.append((nb, [9, 8, 10]))
        for nb in range(NO, 9): seg.append((nb, [0, 1, 2, 3, 4, 5, 6, 7, 9, 8, 10]))
        s.seg = seg
        units = []
        for nb, kss in seg:
            for ks in kss:
                if ks < 8: units.append((sWD, vDMA2, sD, nb * 128 + 32 * ks * 1152))
                elif ks == 8: units.append((sWD, vDMA2, sDh, nb * 128))
                elif ks == 9: units.append((sWO, vDMA2, sO, nb * 128))
        for k in range(0, len(units), 4): st.append(units[k:k + 4])
        s.stages = st
        s.P1 = 9; s.PH = 45; s.P2 = 50
    def dma_items(s, si):
        out = [I(f"s_add_u32 m0, s{sM0}, {RING + (si % 4) * 16384}")]
        for q, (sr, vo, sb, c) in enumerate(s.stages[si]):
            so = sSO[q]
            cc = c - q * 1024
            out.append(I(f"s_add_u32 s{so}, s{sb}, {cc}" if cc >= 0 else f"s_sub_u32 s{so}, s{sb}, {-cc}"))
            out.append(I(f"buffer_load_dwordx4 v{vo}, {srd(sr)}, s{so} offen offset:{q*1024} lds", tag=f"st{si}"))
        return out

    def pf_gu(s, b):
        base = f"s_add_u32 s{sPT}, s{sPG}, {b*128}" if b < 4 else f"s_mov_b32 s{sPT}, s{sPGh}"
        return [I(base), I(f"buffer_load_dword v{vXW}, v{vPFg}, {srd(sWG)}, s{sPT} offen"), I(f"buffer_load_dword v{vXW}, v{vPFg}, {srd(sWU)}, s{sPT} offen")]
    def pf_items(s, si):
        out = []
        if si == s.pfd + 15:
            out += [I(f"s_lshl_b32 s{sPT}, s{sW}, 10"), I(f"s_add_u32 m0, s{sPT}, {W10}"), I(f"s_mul_i32 s{sPT}, s{sW}, {1024-9216}"), I(f"s_add_u32 s{sPT}, s{sPT}, s{sO}"),
                    I(f"s_add_u32 s{sPT}, s{sPT}, {32*1152}"), I(f"v_lshlrev_b32 v{vPFd}, 4, v{vLane}"),
                    I(f"buffer_load_dwordx4 v{vPFd}, {srd(sWO)}, s{sPT} offen lds"),
                    I(f"s_mov_b32 m0, {W10+3584}"), I(f"s_mul_i32 s{sPT}, s{sW}, {-9216}"), I(f"s_add_u32 s{sPT}, s{sPT}, s{sO}"), I(f"s_add_u32 s{sPT}, s{sPT}, {32*1152+3584}"),
                    I(f"buffer_load_dwordx4 v{vPFd}, {srd(sWO)}, s{sPT} offen lds")]
        if not s.wpf: return out
        for b in range(1, 5):
            if si == s.P1 + 9 * (b - 1) + s.pfoff: out += s.pf_gu(b)
        for k in range(3):
            if si == s.pfd + 4 * k:
                out += [I(f"s_add_u32 s{sPT}, s{sPD}, {k*128*2048}"), I(f"buffer_load_dword v{vXW}, v{vPFd}, {srd(sWD)}, s{sPT} offen")]
        if si == s.pfd + 12: out += [I(f"buffer_load_dword v{vXW}, v{vPFd}, {srd(sWO)}, s{sPO} offen")]
        return out

    def make_backbone(s):
        frags = []; groups = []
        pool0 = [FR + 4 * k for k in range(NF)] + [124 + 4 * k for k in range(4)]
        pool1 = [FR + 4 * k for k in range(NF)]
        pool2 = pool1
        cnt = {}
        s.freg = []; s.fprev = []; last = {}
        def addfrag(si, base, offs, static=False):
            pool = pool0 if si < s.P1 else (pool1 if si < s.P2 + 2 else pool2)
            k = cnt.get(id(pool), 0); cnt[id(pool)] = k + 1
            reg = min(pool, key=lambda r: last.get(r, -1))
            s.freg.append(reg); s.fprev.append(last.get(reg, -1)); last[reg] = len(frags)
            frags.append((si, base, [(0 if static else (si % 4) * 16384) + o for o in offs])); return len(frags) - 1
        M = "v_mfma_f32_16x16x32_bf16"
        def emit_chain(items, hook=None):
            fids = [it[0] for it in items]
            ms = []
            for a in range(len(items[0][1])):
                for k, it in enumerate(items):
                    ms.append((k,) + it[1][a])
            groups.append((fids, ms, hook))
        ch = s.chain
        for k in range(9):
            order = [(kk, T) for kk in range(2) for T in range(8)] if ch == 1 else [(None, T) for T in range(8)]
            for kk, T in order:
                its = []
                for k2 in ([kk] if ch == 1 else [0, 1]):
                    f = addfrag(k, TB3 + T, [(2 * k2) * 1024, (2 * k2 + 1) * 1024])
                    t = 2 * k + k2
                    its.append((f, [(ACC[1] + (T * 2 + lt) * 4, XN(lt, t), t == 0, T >= 3, 32) for lt in range(2)]))
                emit_chain(its)
        groups.append(([], [], "ph0_done"))
        for b in range(4):
            for k in range(9):
                si = s.P1 + b * 9 + k
                order = [(kk, q) for kk in range(2) for q in range(4)] if ch == 1 else [(None, q) for q in range(4)]
                for kk, q in order:
                    tau, mat = q >> 1, q & 1
                    its = []
                    for k2 in ([kk] if ch == 1 else [0, 1]):
                        f = addfrag(si, vTR1[tau], [(2 * k2 + mat) * 1024, (2 * k2 + mat) * 1024 + 512])
                        t = 2 * k + k2
                        its.append((f, [(ACC[b & 1] + (q * 4 + lt) * 4, XN(lt, t), t == 0, False, 32) for lt in range(4)]))
                    emit_chain(its)
            groups.append(([], [], f"blk{b}_done"))
        for k in range(5):
            si = s.PH + k
            nk = 4 if k < 4 else 2
            order = [([kk], mat) for kk in range(nk) for mat in range(2)] if ch == 1 else [([k0, k0 + 1], mat) for k0 in range(0, nk, 2) for mat in range(2)]
            for kks, mat in order:
                its = []
                for k2 in kks:
                    o = (k2 & 1) * 8192 + ((k2 >> 1) * 2 + mat) * 1024
                    f = addfrag(si, vTRh, [o, o + 256])
                    t = 4 * k + k2
                    its.append((f, [(ACC[0] + (mat * 4 + lt) * 4, XN(lt, t), t == 0, False, 32) for lt in range(4)]))
                emit_chain(its)
            if k < 4: groups.append(([], [], f"hs{k}_done"))
        groups.append(([], [], "half_done"))
        U = 0
        for nb, kss in s.seg:
            k = 0
            while k < len(kss):
                ksl = [kss[k]]
                if ch == 2 and k + 1 < len(kss) and kss[k] < 10 and kss[k + 1] < 10 and U % 2 == 0: ksl.append(kss[k + 1])
                for tau in range(2):
                    its = []
                    for d, ks in enumerate(ksl):
                        if ks < 10:
                            si = s.P2 + (U + d) // 4; u = (U + d) % 4
                            f = addfrag(si, vTR2[tau], [u * 1024, u * 1024 + 8192])
                        else:
                            f = addfrag(s.P2 + (U - 1) // 4, vK16, [nb * 128 + tau * 32], static=True)
                        its.append((f, [(s.p2acc(nb) + (lt * 2 + tau) * 4, XN(lt, ks, 4 if ks < 10 else 2), ks == 0, False, 32 if ks < 10 else 16) for lt in range(4)]))
                    emit_chain(its)
                U += sum(1 for ks in ksl if ks < 10); k += len(ksl)
            if kss[-1] == 10: groups.append(([], [], f"nb{nb}_done"))
        s.frags = frags; s.groups = groups

    def p2acc(s, nb):
        order = [ACC[0] + 32, XV, ACC[0]]
        return order[nb % 3]
    def fragreg(s, f): return s.freg[f]
    def read_items(s, f):
        si, base, offs = s.frags[f]
        return [I(f"ds_read_b64_tr_b16 {R(s.fragreg(f) + 2 * k, 2)}, v{base} offset:{o}") for k, o in enumerate(offs)]

    def flush(s, pred=None):
        need = []
        seen = set()
        def visit(it):
            if id(it) in seen or it['at'] is not None: return
            seen.add(id(it))
            for d, _ in it['deps']: visit(d)
            if it['gate'] is not None and it['gate'] not in s.gates:
                for m in s.F.items:
                    if isinstance(m['ins'], Mark) and m['ins'].gate == it['gate']: visit(m)
        for it in list(s.F.items):
            if pred is None or pred(it): visit(it)
        n = len(seen)
        while True:
            todo = [it for it in s.F.items if id(it) in seen]
            if not todo: break
            rdy = [it for it in todo if s.F.ready(it, s.gates)]
            if rdy:
                s.e(s.F.take(rdy[0])); s.F.clock += 1; continue
            lat = [it for it in todo if (it['gate'] is None or it['gate'] in s.gates) and all(d[0]['at'] is not None for d in it['deps'])]
            if lat: s.F.clock += 1; continue
            assert s.pending_marks, [it['ins'].text for it in todo[:5]]
            vm = [m.vm for m in s.pending_marks if m.vm is not None]
            s.barrier(vm[-1] if vm else None)
            s.nextra += 1
        s.flushlog.append(n)

    def run_backbone(s, hooks):
        nfr = len(s.frags)
        rq = []
        st = dict(nextread=0, cur=-1, lastread_gap=-99, lastvm=-99, opened=0)
        dq = []
        mlist = []
        for gi, (fids, ms, hook) in enumerate(s.groups):
            if hook: mlist.append(('hook', hook)); continue
            for k, m in enumerate(ms): mlist.append(('m', fids, m, k == 0, k == len(ms) - 1))
        firstuse = {}; lastuse = {}
        gap = 0
        hg = {}; fop = {}
        for ent in mlist:
            if ent[0] == 'm':
                for f in ent[1]:
                    firstuse.setdefault(f, gap); lastuse[f] = gap
                fop.setdefault(('half_done' in hg, ent[2][2]), gap)
                gap += 1
            else: hg[ent[1]] = gap
        dl = {'ph0': hg['blk0_done'] - 4, 'q': hg['blk0_done'] - 2, 'gelu0': hg['blk1_done'] - 2, 'gelu1': hg['blk2_done'] - 2, 'gelu2': hg['blk3_done'] - 2,
              'gelu3': fop[(True, XN(0, 6))] - s.dlm, 'gelu4': fop[(True, XN(0, 8))] - s.dlm, 'att': fop[(True, XN(0, 9))] - s.dlm}
        for b in range(9): dl[f'ln{b}'] = fop[(False, XN(0, 2 * b))] - 12
        for b in range(9): dl[f'lp{b}'] = (fop[(False, XN(1, 2 * (b + 5)))] - 72) if b < 4 else min(fop[(False, XN(2, 2 * b))] - 12, hg['ph0_done'] + 40)
        cost = lambda it: 0 if it['ins'].kind in ('label', 'salu', 'wait') else (2 if it['ins'].kind in ('trans', 'dsw', 'vm', 'sctl', 'mfma') else 1)
        st['def'] = 0.0
        def open_stage(si):
            while any(x.tag in [f"st{k}" for k in range(si + 2)] for x in dq): s.e(dq.pop(0))
            fine = s.pst >= 2 and s.pst <= si < s.pst + 7
            if fine: s.stamp('p', True, True)
            s.barrier(f"st{si}")
            if fine: s.stamp('p', True, True)
            st['cur'] = si; st['opened'] = gap
            if si + 3 < len(s.stages) and si >= 1: dq.extend(s.dma_items(si + 3))
            dq.extend(s.pf_items(si))
            hooks(f"stage{si}")
        def vmgap():
            n = sum(1 for x in dq if x.kind == 'vm')
            left = 30 - (gap - st['opened'])
            return max(2, min(s.dmagap, left // max(n, 1)))
        def can_read(f, gap):
            p = s.fprev[f]
            return p < 0 or lastuse[p] <= gap
        gap = -1
        open_stage(0)
        dq.extend(s.dq0)
        while st['nextread'] < 4:
            for x in s.read_items(st['nextread']): s.e(x)
            st['nextread'] += 1
        s.e(Wait(regs=[f"v{s.fragreg(f)+k}" for f in mlist[0][1] for k in range(4)]))
        gap = -1
        LA = s.D * 4
        for idx, ent in enumerate(mlist):
            if ent[0] == 'hook':
                hooks(ent[1]); continue
            gap += 1
            _, fids, (k, acc, other, first, swap, K), isfirst, islast = ent
            fr = s.fragreg(fids[k])
            n = 4 if K == 32 else 2
            A, B = R(fr, n), other
            if swap: A, B = B, A
            C = "0" if first else R(acc, 4)
            op = "v_mfma_f32_16x16x32_bf16" if K == 32 else "v_mfma_f32_16x16x16_bf16"
            mi = I(f"{op} {R(acc,4)}, {A}, {B}, {C}")
            if any((it['ins'].wr & (mi.rd | mi.wr)) or (it['ins'].rd & mi.wr) for it in s.F.items):
                s.flush(lambda it: bool((it['ins'].wr & (mi.rd | mi.wr)) or (it['ins'].rd & mi.wr)))
            s.e(mi)
            s.F.clock += 2
            sc = True; v = 2
            def refill():
                nonlocal sc, v
                f = st['nextread']
                if rq or f >= nfr or not can_read(f, gap) or firstuse[f] - gap > LA: return
                si = s.frags[f][0]
                if si > st['cur']:
                    if gap - st['lastread_gap'] < s.bdelay and firstuse[f] - gap > 8: return
                    if v < 2: return
                    open_stage(si); sc = False; v = 0
                rq.extend((x, f) for x in s.read_items(f)); st['nextread'] += 1
            nxt = None
            if islast:
                nxt = next((x for x in mlist[idx + 1:] if x[0] == 'm'), None)
            if nxt is not None:
                mx = max(nxt[1])
                while st['nextread'] <= mx or (rq and rq[0][1] <= mx):
                    if not rq:
                        f = st['nextread']; si = s.frags[f][0]
                        if si > st['cur']: open_stage(si)
                        rq.extend((x, f) for x in s.read_items(f)); st['nextread'] += 1
                    s.e(rq.pop(0)[0]); v -= 1; s.late += 1
                regs = [f"v{s.fragreg(f)+q}" for f in nxt[1] for q in range(4)]
                for m2 in mlist[idx + 1: idx + 9]:
                    if m2[0] == 'm' and m2[1] is nxt[1]: regs += list(I(f"v_mov_b32 v0, {m2[2][2]}").rd)
                s.e(Wait(regs=regs)); sc = False
            refill()
            slack = (firstuse[rq[0][1]] - gap) if rq else 99
            if dq and dq[0].kind == 'valu' and v > 0 and not rq:
                s.e(dq.pop(0)); v -= 1; sc = False
            if sc and dq and dq[0].kind == 'salu':
                s.e(dq.pop(0)); sc = False
                if dq and dq[0].kind == 'salu' and v == 2 and not rq:
                    s.e(dq.pop(0)); v -= 1
            elif v == 2 and sc and dq and dq[0].kind == 'vm' and slack > 9 and gap - st['lastvm'] >= vmgap():
                s.e(dq.pop(0)); v = 0; st['lastvm'] = gap
            elif sc:
                for it in s.F.items:
                    if it['ins'].kind in ('salu', 'label', 'wait') and s.F.ready(it, s.gates):
                        s.e(s.F.take(it)); sc = False; break
            if v == 2 and rq:
                s.e(rq.pop(0)[0]); v -= 1; st['lastread_gap'] = gap
                pair = bool(rq) and s.frags[rq[0][1]][0] < s.P1
                refill()
                if rq and v == 1 and (pair or firstuse[rq[0][1]] - gap < LA - s.ddslack):
                    s.e(rq.pop(0)[0]); v -= 1
            rate = 0.0; acc_c = 0
            for gname, d in sorted(((g_, d_) for g_, d_ in dl.items()), key=lambda x: x[1]):
                c_ = sum(cost(it) for it in s.F.items if it['group'] == gname)
                if c_ == 0: continue
                acc_c += c_
                rate = max(rate, acc_c / max(d - gap, 1))
            st['def'] = min(st['def'] + rate, 6.0) if rate > 0 else 0.0
            extra = 0
            while v > 0 or (st['def'] >= s.defth and extra < 4):
                cand = None
                rdy = [it for it in s.F.items if s.F.ready(it, s.gates)]
                if v == 2:
                    big = [it for it in rdy if it['ins'].kind in ('trans', 'dsw', 'sctl', 'mfma', 'dsr') or (it['ins'].kind == 'vm' and sc and gap - st['lastvm'] >= s.fvmgap)]
                    if big: cand = big[0]
                elif s.S[-1].kind == 'dsr':
                    big = [it for it in rdy if it['ins'].kind == 'dsr']
                    if big: cand = big[0]
                if cand is None and st['def'] >= s.defth:
                    any_ = [it for it in rdy if it['ins'].kind in ('valu', 'salu', 'label', 'wait', 'trans', 'dsw', 'mfma', 'dsr') and it['group'] in dl]
                    if any_: cand = any_[0]
                if cand is None and v > 0:
                    sm = [it for it in rdy if it['ins'].kind in ('valu', 'salu', 'label', 'wait')]
                    if sm: cand = sm[0]
                if cand is None: break
                kd = cand['ins'].kind
                if kd == 'vm' and s.fvmreset: st['lastvm'] = gap
                if cand['group'] in dl: st['def'] -= cost(cand)
                s.e(s.F.take(cand))
                if kd in ('label',): continue
                c = 2 if kd in ('trans', 'dsw', 'vm', 'sctl', 'mfma') else 1
                if c > v: extra += c - max(v, 0); s.novf += c - max(v, 0)
                v -= c; s.F.clock += c
            st['def'] = max(st['def'], -4.0)
            s.F.clock += max(v, 0)
        while dq: s.e(dq.pop(0))

    def phi(s, r, t, grp, nb):
        F = s.F
        F.add(f"v_mul_f32 v{t}, s{sL2E}, v{r}", nb, grp)
        F.add(f"v_min_f32 v{t}, 0, v{t}", nb, grp)
        F.add(f"v_exp_f32 v{t}, v{t}", nb, grp)
        if s.alpha: F.add(f"v_fma_f32 v{r}, v{r}, s{sIA}, v{vT2[6]}", nb, grp)
        else: F.add(f"v_add_f32 v{r}, s{sEPS}, v{r}", nb, grp)
        F.add(f"v_max_f32 v{r}, s{sEPS}, v{r}", nb, grp)
        F.add(f"v_add_f32 v{r}, v{r}, v{t}", nb, grp)

    def ph0_epilogue(s):
        F = s.F; nb = F.clock + 10; g = 'ph0'
        A = ACC[1]
        tmp = vT + vT2[3:6]; ti = 0
        if s.alpha: F.add(f"v_mov_b32 v{vT2[6]}, s{sEPS}", 0, g)
        reg = lambda T, lt, r: A + (T * 2 + lt) * 4 + r
        for T in (3, 4):
            for q in range(8):
                s.phi(reg(T, 0, q), tmp[ti % len(tmp)], g, nb); ti += 1
        if s.alpha:
            for T in (5, 6):
                for q in range(8): F.add(f"v_mul_f32 v{reg(T,0,q)}, s{sIA}, v{reg(T,0,q)}", nb, g)
        for q in range(8):
            r = reg(7, 0, q); t = tmp[ti % len(tmp)]; ti += 1
            t2 = WIN + 8 + q
            if s.alpha: F.add(f"v_mul_f32 v{t2}, s{sIA}, v{r}", nb, g)
            else: F.add(f"v_mov_b32 v{t2}, v{r}", nb, g)
            s.phi(r, t, g, nb)
            F.add(f"v_cndmask_b32 v{r}, v{t2}, v{r}, s[{sMK}:{sMK+1}]", nb, g)
            F.add(f"v_cndmask_b32 v{r}, v{r}, 1.0, s[{sM1}:{sM1+1}]", nb, g)
        for T in (3, 4, 5, 6, 7):
            for q in range(4): F.add(f"v_cvt_pk_bf16_f32 v{reg(T,0,q)}, v{reg(T,0,2*q)}, v{reg(T,0,2*q+1)}", nb, g)
        kf = {0: reg(3, 0, 0), 1: reg(4, 0, 0), 2: reg(7, 0, 0)}
        vf = {0: reg(5, 0, 0), 1: reg(6, 0, 0), 2: reg(7, 0, 0)}
        dst = [reg(3, 1, 0), reg(4, 1, 0), reg(5, 1, 0), reg(6, 1, 0), reg(7, 1, 0), WIN + 8, WIN + 12, WIN + 16]
        for n, (kx, vy) in enumerate(KVPROD):
            F.add(f"v_mfma_f32_16x16x32_bf16 {R(dst[n],4)}, {R(kf[kx],4)}, {R(vf[vy],4)}, 0", nb, g)
        for n in range(8):
            F.add(f"v_add_u32 v{WIN+n}, s{sM0}, v{WIN+n}", 0, g)
            F.add(f"ds_write_b128 v{WIN+n}, {R(dst[n],4)}", nb, g, barrier_dep='xr8')
        F.add(Mark('kvs'), nb, g)
        t = WIN + 22
        F.add(f"v_min_u32 v{t}, 3056, v{vREC}", 0, g)
        F.add(f"v_add_u32 v{t}, {KVS}, v{t}", 0, g)
        for w in range(4):
            F.add(f"ds_read_b128 {R(WIN+4*w,4)}, v{t} offset:{w*4096}", 0, g, barrier_dep='kvs')
        for w in (1, 3):
            for q in range(4): F.add(f"v_add_f32 v{WIN+4*(w-1)+q}, v{WIN+4*(w-1)+q}, v{WIN+4*w+q}", 0, g)
        for q in range(4): F.add(f"v_add_f32 v{WIN+q}, v{WIN+q}, v{WIN+8+q}", 0, g)
        F.add(f"s_mul_i32 s{sT[0]}, s{sMT}, 3072", 0, g)
        F.add(f"s_add_u32 s{sT[0]}, s{sT[0]}, s{sREC}", 0, g)
        F.add(I(f"buffer_store_dwordx4 {R(WIN,4)}, v{vREC}, {srd(sWS)}, s{sT[0]} offen sc1", tag='rec'), 0, g)
        F.add(Mark('recdone', vm='rec'), 0, g)
        s.flag(1, WIN + 20, g, 'recdone')
        for T in (0, 1, 2):
            for q in range(8):
                s.phi(reg(T, 0, q), tmp[ti % len(tmp)], 'q', nb); ti += 1
        for lt in range(2):
            for h in range(2):
                F.add(f"v_cvt_pk_bf16_f32 v{PQ+lt*6+h}, v{reg(2,lt,2*h)}, v{reg(2,lt,2*h+1)}", nb, 'q')
                F.add(f"v_cvt_pk_bf16_f32 v{PQ+lt*6+2+h}, v{reg(0,lt,2*h)}, v{reg(0,lt,2*h+1)}", nb, 'q')
                F.add(f"v_cvt_pk_bf16_f32 v{PQ+lt*6+4+h}, v{reg(1,lt,2*h)}, v{reg(1,lt,2*h+1)}", nb, 'q')

    def flag(s, val, tmp, g, gate=None, direct=False):
        ins = [I(f"v_mov_b32 v{tmp}, {val}"), I(f"buffer_store_dword v{tmp}, off, {srd(sWS)}, s{sFLG} sc1", tag=f'fl{val}')]
        if direct:
            for x in ins: s.e(x)
            return None
        s.F.add(ins[0], 0, g)
        return s.F.add(ins[1], 0, g, barrier_dep=gate)

    def poll(s, name, load, vflag, need, rd, g, direct=False, after=None, sleep=16):
        chk = [f"v_cmp_gt_u32 vcc, {need}, v{vflag}", f"s_cbranch_vccnz L_sp_{name}", f"L_bk_{name}:"]
        s.tail += [f"L_sp_{name}:", f"s_mov_b32 s{sSPIN}, 0", f"L_lp_{name}:", f"s_sleep {sleep}", load, "s_waitcnt vmcnt(0)",
                   f"s_add_u32 s{sSPIN}, s{sSPIN}, 1", f"s_cmp_gt_u32 s{sSPIN}, 0x40000", f"s_cbranch_scc1 L_bk_{name}",
                   f"v_cmp_gt_u32 vcc, {need}, v{vflag}", "s_nop 1", f"s_cbranch_vccnz L_lp_{name}", f"s_branch L_bk_{name}"]
        raw = Raw(chk, rd=rd, wr=[f"v{vflag}", f"s{sSPIN}", "scc"])
        if direct: return I(load), raw
        it = s.F.add(I(load), 0, g)
        for p in (after or []): it['deps'].append((p, s.pdelay))
        return s.F.add(raw, 0, g)

    def rr(s, b0, n):
        LB, SB, sL, sXo = {0: (ACC[1], WIN, 57, 58), 4: (s.rb4, TB3, 63, 67), 6: (ACC[1] + 32, WIN, 57, 58), 8: (FR, TB3, 63, 67)}[b0]
        va, vx, vf = SB + 8, SB + 9, SB + 10
        X = SB + 12; T = (SB + 16, SB + 17, SB + 18, SB + 19)
        sh = {4: 0, 2: 1, 1: 2}[n]
        pre = [f"s_and_b32 s{sL}, s{sW}, {(1<<sh)-1}", f"s_lshl_b32 s{sL}, s{sL}, 6", f"v_add_u32 v{va}, s{sL}, v{vLane}", f"v_lshlrev_b32 v{va}, {4-sh}, v{va}",
               f"v_bfe_u32 v{vx}, v{va}, 4, 4", f"v_mul_u32_u24 v{vx}, 1152, v{vx}", f"v_lshrrev_b32 v{T[0]}, 8, v{va}", f"v_lshl_add_u32 v{vx}, v{T[0]}, 3, v{vx}"]
        if n < 4: pre += [f"v_bfe_u32 v{T[0]}, v{va}, 3, 1", f"v_lshl_add_u32 v{vx}, v{T[0]}, 5, v{vx}"]
        if n == 1: pre += [f"v_and_b32 v{T[0]}, 4, v{va}", f"v_add_u32 v{vx}, v{T[0]}, v{vx}"]
        pre += [f"s_lshr_b32 s{sL}, s{sW}, {sh}", f"s_add_u32 s{sL}, s{sL}, {b0}", f"s_lshl_b32 s{sXo}, s{sL}, 7", f"s_add_u32 s{sXo}, s{sXo}, s{sXB}",
                f"s_lshl_b32 s{sL}, s{sL}, 14", f"s_add_u32 s{sL}, s{sL}, s{sRB}"]
        sfx = {4: "x4", 2: "x2", 1: ""}[n]
        if n == 4:
            pre += [f"buffer_load_dwordx2 {R(X,2)}, v{vx}, {srd(sX)}, s{sXo} offen", f"buffer_load_dwordx2 {R(X+2,2)}, v{vx}, {srd(sX)}, s{sXo} offen offset:32"]
        else:
            pre += [f"buffer_load_dword{sfx} {R(X,n)}, v{vx}, {srd(sX)}, s{sXo} offen"]
        load = f"buffer_load_dword v{vf}, v{vFP}, {srd(sWS)}, s{sFB} offen sc1"
        loads = []
        for k in range(16):
            loads.append(f"buffer_load_dword{sfx} {R(LB+n*k,n)}, v{va}, {srd(sWS)}, s{sL} offen sc1")
            if k < 15: loads.append(f"s_add_u32 s{sL}, s{sL}, {PSTRIDE_J}")
        fin = []
        for k in range(16):
            for q in range(n):
                x = LB + n * k + q
                if k == 0: fin += [f"v_lshlrev_b32 v{SB+2*q}, 16, v{x}", f"v_and_b32 v{SB+2*q+1}, 0xffff0000, v{x}"]
                else:
                    t = T[(k * n + q) % 4]
                    fin += [f"v_lshlrev_b32 v{t}, 16, v{x}", f"v_and_b32 v{x}, 0xffff0000, v{x}", f"v_add_f32 v{SB+2*q}, v{SB+2*q}, v{t}", f"v_add_f32 v{SB+2*q+1}, v{SB+2*q+1}, v{x}"]
        c = f32(1.0 / (s.al * s.al))
        for q in range(n):
            t = T[q]
            fin += [f"v_lshlrev_b32 v{t}, 16, v{X+q}", f"v_and_b32 v{X+q}, 0xffff0000, v{X+q}",
                    f"v_fmamk_f32 v{SB+2*q}, v{SB+2*q}, {c}, v{t}", f"v_fmamk_f32 v{SB+2*q+1}, v{SB+2*q+1}, {c}, v{X+q}",
                    f"v_cvt_pk_bf16_f32 v{X+q}, v{SB+2*q}, v{SB+2*q+1}"]
        of = s.oflag
        if n == 4:
            fin += [f"buffer_store_dwordx2 {R(X,2)}, v{vx}, {srd(sOUT)}, s{sXo} offen{of}", f"buffer_store_dwordx2 {R(X+2,2)}, v{vx}, {srd(sOUT)}, s{sXo} offen offset:32{of}"]
        else:
            fin += [f"buffer_store_dword{sfx} {R(X,n)}, v{vx}, {srd(sOUT)}, s{sXo} offen{of}"]
        return dict(pre=pre, load=load, vf=vf, need=2 + b0 + n - 1, loads=loads, fin=fin, name=f"r{b0}")

    def rr_filler(s, b0, n):
        r = s.rr(b0, n); g = f'rr{b0}'; F = s.F; n0 = len(F.items)
        for x in r['pre']: F.add(x, 0, g)
        s.poll(r['name'], r['load'], r['vf'], r['need'], [f"v{vFP}"], g, after=[s.flagit[b0 + n - 1]])
        for x in r['loads']: F.add(x, 0, g)
        n1 = len(F.items)
        F.items[:] = F.items[n0:] + F.items[:n0]
        for x in r['fin']: F.add(x, 0, g)

    def gelu(s, b):
        F = s.F; nb = F.clock + 10; g = f'gelu{b}'
        half = (b == 4)
        A = ACC[b & 1]
        tmp = vT + vT2[3:6]; ti = 0
        for lt in range(4):
            for tau in range(1 if half else 2):
                G0 = A + ((tau * 2) * 4 + lt) * 4; U0 = G0 + 16
                for r in range(4):
                    G = G0 + r; U = U0 + r; t = tmp[ti % len(tmp)]; ti += 1
                    F.add(f"v_fma_f32 v{t}, v{G}, v{G}, s{sK}", nb, g)
                    F.add(f"v_mul_f32 v{U}, v{G}, v{U}", nb, g)
                    F.add(f"v_mul_f32 v{G}, v{t}, v{G}", nb, g)
                    if not s.alpha: F.add(f"v_mul_f32 v{G}, s{sC1}, v{G}", nb, g)
                    F.add(f"v_exp_f32 v{G}, v{G}", nb, g)
                    F.add(f"v_add_f32 v{G}, 1.0, v{G}", nb, g)
                    F.add(f"v_rcp_f32 v{G}, v{G}", nb, g)
                    F.add(f"v_mul_f32 v{U}, v{U}, v{G}", nb, g)
                D0 = A + lt * 4
                for h in range(2):
                    F.add(f"v_cvt_pk_bf16_f32 v{D0+tau*2+h}, v{U0+2*h}, v{U0+2*h+1}", nb, g)
                if not half and s.w64:
                    F.add(f"ds_write_b64 v{vHW[lt>>1]}, {R(A+lt*4+tau*2,2)} offset:{b*16384+(lt&1)*1024+tau*8}", nb, g)
            if not half:
                if not s.w64: F.add(f"ds_write_b128 v{vHW[lt>>1]}, {R(A+lt*4,4)} offset:{b*16384+(lt&1)*1024}", nb, g)
            else:
                F.add(f"ds_write_b64 v{vHH[lt>>1]}, {R(A+lt*4,2)} offset:{(lt&1)*1024}", nb, g)
        F.add(Mark(f'h{b}'), nb, g)

    def attn_finish(s):
        F = s.F; g = 'att'
        W = WIN
        F.add(f"v_mov_b32 v{W+20}, 0", 0, g)
        s.poll('init', f"global_load_dword v{W+21}, v{W+20}, s[20:21] sc1", W + 21, 256, [f"v{W+20}"], g, sleep=64)
        F.add(f"v_and_b32 v{W+20}, 15, v{vLane}", 0, g); F.add(f"v_lshlrev_b32 v{W+20}, 13, v{W+20}", 0, g)
        F.add(f"s_and_b32 s{sT[1]}, s{sFLG}, {~(15<<13) & 0xffffffff}", 0, g)
        s.poll('kv', f"buffer_load_dword v{W+21}, v{W+20}, {srd(sWS)}, s{sT[1]} offen sc1", W + 21, 1, [f"v{W+20}", f"s{sT[1]}"], g)
        for bt in range(4):
            for q in range(4):
                m = bt * 4 + q
                F.add(f"s_add_u32 s{sT[3]}, s{sREC}, {m*3072}", 0, g)
                F.add(I(f"buffer_load_dwordx4 {R(W+4*q,4)}, v{vREC}, {srd(sWS)}, s{sT[3]} offen sc1"), 0, g)
            for q in (0, 2):
                for r in range(4): F.add(f"v_add_f32 v{W+4*q+r}, v{W+4*q+r}, v{W+4*q+4+r}", 0, g)
            for r in range(4):
                if bt == 0: F.add(f"v_add_f32 v{W+16+r}, v{W+r}, v{W+8+r}", 0, g)
                else:
                    F.add(f"v_add_f32 v{W+r}, v{W+r}, v{W+8+r}", 0, g)
                    F.add(f"v_add_f32 v{W+16+r}, v{W+16+r}, v{W+r}", 0, g)
        GA = TB3
        for r in range(4): F.add(f"v_and_b32 v{W+16+r}, v{W+16+r}, v{GA+10+(r>>1)}", 0, g)
        F.add(f"v_min_u32 v{W+20}, 3072+16, v{vREC}", 0, g)
        F.add(f"v_add_u32 v{W+20}, {SUMB}, v{W+20}", 0, g)
        F.add(f"ds_write_b128 v{W+20}, {R(W+16,4)}", 0, g)
        F.add(Mark('sum'), 0, g)
        OUT = W + 12; RC = W + 20
        def tile(lo, hi, f1, name):
            first = True
            if lo is not None: F.add(f"ds_read_b128 {R(W,4)}, v{GA+lo}", 0, g, barrier_dep='sum')
            F.add(f"ds_read_b128 {R(W+4,4)}, v{GA+hi}", 0, g, barrier_dep='sum')
            if f1 is not None: F.add(f"ds_read_b128 {R(W+8,4)}, v{GA+f1}", 0, g, barrier_dep='sum')
            for q in range(4):
                if lo is None and q < 2: F.add(f"v_mov_b32 v{W+q}, 0", 0, g)
                else: F.add(f"v_cvt_pk_bf16_f32 v{W+q}, v{W+2*q}, v{W+2*q+1}", 0, g)
            if f1 is not None:
                for q in range(2): F.add(f"v_cvt_pk_bf16_f32 v{W+8+q}, v{W+8+2*q}, v{W+8+2*q+1}", 0, g)
            for lt in range(2):
                F.add(f"v_mfma_f32_16x16x32_bf16 {R(OUT+4*lt,4)}, {R(W,4)}, {R(PQ+lt*6+2,4)}, 0", 0, g)
                if f1 is not None:
                    F.add(f"v_mfma_f32_16x16x16_bf16 {R(OUT+4*lt,4)}, {R(W+8,2)}, {R(PQ+lt*6,2)}, {R(OUT+4*lt,4)}", 0, g)
        tile(0, 1, 2, 'D')
        for lt in range(2):
            for h in range(2):
                F.add(f"v_add_f32 v{RC+2*lt+h}, s{sEPS}, v{OUT+4*lt+h}", 0, g)
                F.add(f"v_rcp_f32 v{RC+2*lt+h}, v{RC+2*lt+h}", 0, g)
                if s.alpha: F.add(f"v_mul_f32 v{RC+2*lt+h}, s{sA2}, v{RC+2*lt+h}", 0, g)
        ao = vT2[0]
        F.add(f"s_lshl_b32 s{sT[4]}, s{sW}, 13", 0, g)
        F.add(f"s_and_b32 s{sT[4]}, s{sT[4]}, 8192", 0, g)
        F.add(f"s_sub_u32 s{sT[4]}, {9*8192}, s{sT[4]}", 0, g)
        F.add(f"v_add_u32 v{ao}, s{sT[4]}, v{vHW[0]}", 0, g)
        def finish(which, off):
            for lt in range(2):
                for r in range(4):
                    o = OUT + 4 * lt + r
                    if which == 0: rc = RC + 2 * lt
                    elif which == 2 or r >= 2: rc = RC + 2 * lt + 1
                    else:
                        rc = W + 10 + lt
                        if r == 0: F.add(f"v_cndmask_b32 v{rc}, v{RC+2*lt+1}, v{RC+2*lt}, s[{sMG}:{sMG+1}]", 0, g)
                    F.add(f"v_mul_f32 v{o}, v{o}, v{rc}", 0, g)
                for h in range(2): F.add(f"v_cvt_pk_bf16_f32 v{OUT+4*lt+h}, v{OUT+4*lt+2*h}, v{OUT+4*lt+2*h+1}", 0, g)
                F.add(f"ds_write_b64 v{ao}, {R(OUT+4*lt,2)} offset:{off+lt*1024}", 0, g)
        tile(3, 4, None, 'T0'); finish(0, 0)
        tile(5, 6, 7, 'T1'); finish(1, 8)
        tile(None, 8, 9, 'T2'); finish(2, 8192)
        F.add(Mark('o'), 0, g)

    def p2_epilogue(s, nb_):
        F = s.F; nb = F.clock + 10; g = f'ep{nb_}'
        a0 = s.p2acc(nb_)
        so = (sT[(nb_ & 1) * 2], sT[(nb_ & 1) * 2 + 1])
        F.add(f"s_add_u32 s{so[0]}, s{sP}, {nb_*16384}", 0, g)
        F.add(f"s_add_u32 s{so[0]}, s{so[0]}, s{sROT}", 0, g)
        F.add(f"s_xor_b32 s{so[1]}, s{so[0]}, 1024", 0, g)
        if s.stcl and nb_ < 8: F.add(Mark(f'cl{nb_}'), 0, g + 'm')
        prev = None
        for lt in range(4):
            b = a0 + lt * 8
            for q in range(4): F.add(f"v_cvt_pk_bf16_f32 v{b+q}, v{b+2*q}, v{b+2*q+1}", nb, g)
            it = F.add(I(f"buffer_store_dwordx4 {R(b,4)}, v{vHW[lt>>1]}, {srd(sWS)}, s{so[lt&1]} offen sc1", tag=f'p{nb_}'), nb, g,
                       barrier_dep=(f'cl{nb_}' if s.stcl and nb_ < 8 else None))
            if prev is not None and nb_ < 8: it['deps'].append((prev, s.stsp))
            prev = it
        if nb_ in (3, 5):
            F.add(Mark(f'pd{nb_}', vm=f'p{nb_}'), 0, g, after=[x for x in F.items if x['ins'].kind == 'vm' and x['group'].startswith('ep')])
            s.flagit[nb_] = s.flag(2 + nb_, vT[nb_ & 1], g + 'f', f'pd{nb_}')

    def tbl_load(s, grp, dst):
        off = grp * 1024
        if off < 4096: return [f"global_load_dwordx4 {R(dst,4)}, v{vT[2]}, s[{sTB}:{sTB+1}] offset:{off}"]
        raise

    def touches(s, lo, n):
        regs = {f"v{r}" for r in range(lo, lo + n)}
        return lambda it: bool((it['ins'].rd | it['ins'].wr) & regs)

    def kernelA(s):
        e = s.e
        s.make_stages(); s.make_backbone()
        e("s_cmp_ge_u32 s2, 256"); e("s_cbranch_scc1 L_endA")
        e("s_load_dwordx16 s[4:19], s[0:1], 0"); e("s_load_dwordx4 s[20:23], s[0:1], 64")
        s.stamp(nowait=True)
        e(f"s_getpc_b64 s[{sTB}:{sTB+1}]"); e("L_pc:")
        e(f"s_lshr_b32 s3, s2, 3"); e("s_lshl_b32 s3, s3, 12"); e("v_lshl_add_u32 v2, v0, 4, s3"); e(f"v_min_u32 v2, L_codeend-L_pc-4, v2")
        e(f"global_load_dword v{vXW}, v2, s[{sTB}:{sTB+1}]")
        e(f"v_lshrrev_b32 v1, 6, v0"); e(f"v_readfirstlane_b32 s{sW}, v1")
        e(f"v_and_b32 v{vLane}, 63, v0")
        odd = sT[0]
        e(f"s_and_b32 s{sJ}, s2, 7"); e(f"s_lshl_b32 s{sJ}, s{sJ}, 1"); e(f"s_bfe_u32 s{odd}, s2, 0x10003"); e(f"s_add_u32 s{sJ}, s{sJ}, s{odd}")
        e(f"s_lshr_b32 s{sMT}, s2, 4")
        e(f"v_lshrrev_b32 v1, 3, v{vLane}"); e("v_mul_u32_u24 v1, 1152, v1"); e(f"v_and_b32 v3, 7, v{vLane}"); e("v_lshl_add_u32 v1, v3, 4, v1")
        e(f"s_lshl_b32 s{sT[1]}, s{sMT}, 2"); e(f"s_add_u32 s{sT[1]}, s{sT[1]}, s{sW}"); e(f"s_mul_i32 s{sT[1]}, s{sT[1]}, {32*1152}")
        e(f"s_and_b32 s{sROT}, s2, {s.rot}"); e(f"s_mul_i32 s{sXO}, s{sROT}, 9216"); e(f"s_add_u32 s{sXO}, s{sXO}, s{sT[1]}")
        e(Wait(alllg=True))
        e(f"s_mov_b32 s{sX}, s4"); e(f"s_mov_b32 s{sX+1}, s5"); e(f"s_mov_b32 s{sX+2}, {2048*1152}"); e(f"s_mov_b32 s{sX+3}, 0x20000")
        def xreg(a, b):
            if b in (5, 6): return XV + ((b - 5) * 4 + a) * 4
            if b in (7, 8): return ACC[0] + ((b - 7) * 4 + a) * 4
            if a == 3: return ACC[0] + 32 + (b - 1) * 4 if b else ACC[1] + 60
            return ACC[1] + (a * 5 + b) * 4
        def xloads(a):
            out = []
            if a: out += [f"s_xor_b32 s{sXO}, s{sROT}, {a}", f"s_mul_i32 s{sXO}, s{sXO}, 9216", f"s_add_u32 s{sXO}, s{sXO}, s{sT[1]}"]
            for b in range(9): out.append(f"buffer_load_dwordx4 {R(xreg(a,b),4)}, v1, {srd(sX)}, s{sXO} offen offset:{b*128}")
            return out
        for a in range(s.xfirst):
            for x in xloads(a): e(x)
        for (b, p, n) in ((sQKV, 6, 576 * 3456), (sWO, 8, 576 * 1152), (sWG, 12, 576 * 9216), (sWU, 14, 576 * 9216), (sWD, 16, 4608 * 1152)):
            e(f"s_sub_u32 s{b}, s{p}, 4096"); e(f"s_subb_u32 s{b+1}, s{p+1}, 0"); e(f"s_mov_b32 s{b+2}, {n+4096}"); e(f"s_mov_b32 s{b+3}, 0x20000")
        e(f"s_mov_b32 s{sWS}, s22"); e(f"s_mov_b32 s{sWS+1}, s23"); e(f"s_mov_b32 s{sWS+2}, {WSREC}"); e(f"s_mov_b32 s{sWS+3}, 0x20000")
        e(f"s_lshl_b32 s{sM0}, s{sW}, 12")
        e(f"s_mul_i32 s{sQ}, s{sJ}, 72"); e(f"s_and_b32 s{sQ}, s{sQ}, -16"); e(f"s_add_u32 s{sQ}, s{sQ}, 4096")
        t5, t6 = vT2[4], vT2[5]
        e(f"v_lshrrev_b32 v3, 4, v{vLane}"); e(f"s_and_b32 s{sT[2]}, s{sW}, 1"); e(f"s_lshl_b32 s{sT[2]}, s{sT[2]}, 3")
        e(f"v_lshlrev_b32 v{t5}, 1, v3"); e(f"v_or_b32 v{t5}, s{sT[2]}, v{t5}"); e(f"v_and_b32 v{t6}, 15, v{vLane}"); e(f"v_xor_b32 v{t5}, v{t5}, v{t6}"); e(f"v_min_u32 v{t5}, 14, v{t5}")
        e(f"v_mul_u32_u24 v{t6}, 52, v{t5}"); e(f"v_lshrrev_b32 v{t6}, 8, v{t6}"); e(f"v_mul_u32_u24 v{t6}, {1152-80}, v{t6}"); e(f"v_lshl_add_u32 v{t5}, v{t5}, 4, v{t6}")
        e(f"s_lshl_b32 s{sT[2]}, s{sW}, 3"); e(f"v_add_u32 v2, s{sT[2]}, v3"); e("v_mul_u32_u24 v2, 3456, v2"); e(f"v_add_u32 v{vDMA0}, v2, v{t5}")
        vXW2 = PQ + 10
        e(f"s_mul_i32 s{sT[2]}, s{sW}, 20480"); e(f"s_add_u32 s{sT[2]}, s{sT[2]}, {HB}")
        e(f"s_xor_b32 s{sT[3]}, s{sW}, 1"); e(f"s_mul_i32 s{sT[3]}, s{sT[3]}, 20480"); e(f"s_add_u32 s{sT[3]}, s{sT[3]}, {HB}")
        e(f"v_lshlrev_b32 v{t5}, 1, v3"); e(f"v_xor_b32 v{t5}, v{t5}, v{vLane}"); e(f"v_lshlrev_b32 v{t5}, 4, v{t5}"); e(f"v_xor_b32 v{t6}, 16, v{t5}")
        e(f"v_add_u32 v{TB5}, s{sT[2]}, v{t5}"); e(f"v_add_u32 v{TB5+1}, s{sT[2]}, v{t6}"); e(f"v_add_u32 v{TB5+2}, s{sT[3]}, v{t5}"); e(f"v_add_u32 v{TB5+3}, s{sT[3]}, v{t6}")
        e(f"v_bfe_u32 v{t5}, v{vLane}, 2, 1"); e(f"v_and_b32 v{t6}, 3, v{vLane}"); e(f"v_lshl_add_u32 v2, v{t6}, 1, v{t5}"); e(f"v_lshrrev_b32 v3, 3, v{vLane}")
        e(f"v_xor_b32 v2, v2, v3"); e(f"v_lshl_add_u32 v2, v{t6}, 4, v2"); e(f"v_lshlrev_b32 v2, 4, v2"); e(f"v_lshl_add_u32 v2, v{t5}, 10, v2"); e(f"v_add_u32 v{vXW2}, s{sT[2]}, v2")
        e(f"s_and_b32 s{sT[2]}, s{sROT}, 1"); e(f"s_lshl_b32 s{sT[2]}, s{sT[2]}, 7"); e(f"v_add_u32 v{vXW2}, s{sT[2]}, v{vXW2}"); e(f"v_xor_b32 v{vXW2+1}, 128, v{vXW2}")
        e(f"s_add_u32 s{sTB}, s{sTB}, L_tbl-L_pc"); e(f"s_addc_u32 s{sTB+1}, s{sTB+1}, 0")
        vg, vr, vc, va, vb = WIN + 8, WIN + 9, WIN + 10, WIN + 11, WIN + 12
        sp = sT[4]
        e(f"s_and_b32 s{sp}, s{sW}, 1")
        e(f"v_lshrrev_b32 v{vg}, 4, v{vLane}"); e(f"v_bfe_u32 v{vr}, v{vLane}, 2, 2"); e(f"v_and_b32 v{vc}, 3, v{vLane}")
        e(f"v_lshrrev_b32 v2, 3, v{vLane}"); e(f"v_and_b32 v3, 7, v{vLane}")
        e(f"v_and_b32 v{va}, 2, v2"); e(f"v_xor_b32 v{va}, v{va}, v3"); e(f"s_lshl_b32 s{sT[2]}, s{sp}, 2"); e(f"v_xor_b32 v{va}, s{sT[2]}, v{va}")
        e(f"v_mul_u32_u24 v{vb}, 9216, v2"); e(f"v_lshl_add_u32 v{vDMA1}, v{va}, 4, v{vb}")
        e(f"v_lshlrev_b32 v{va}, 1, v{vg}"); e(f"v_xor_b32 v{va}, v{va}, v3"); e(f"v_mul_u32_u24 v{vb}, 1152, v2"); e(f"v_lshl_add_u32 v{vDMA2}, v{va}, 4, v{vb}")
        e(f"v_and_b32 v{va}, 2, v{vg}"); e(f"v_xor_b32 v{va}, v{va}, v{vc}"); e(f"v_lshrrev_b32 v{vb}, 2, v{vLane}"); e(f"v_mul_u32_u24 v{vb}, 9216, v{vb}"); e(f"v_lshl_add_u32 v{vDMAh}, v{va}, 4, v{vb}")
        e(f"v_and_b32 v2, 1, v{vg}")
        e(f"v_lshrrev_b32 v3, 1, v{vg}"); e(f"v_lshlrev_b32 v3, 12, v3"); e(f"v_lshl_add_u32 v3, v2, 9, v3")
        e(f"v_lshrrev_b32 v{va}, 1, v{vr}"); e(f"v_lshl_add_u32 v{va}, v2, 1, v{va}"); e(f"s_lshl_b32 s{sT[2]}, s{sp}, 1"); e(f"v_xor_b32 v{va}, s{sT[2]}, v{va}")
        e(f"v_lshlrev_b32 v{va}, 5, v{va}"); e(f"v_lshl_add_u32 v{va}, v{vr}, 7, v{va}"); e(f"v_lshl_add_u32 v{va}, v{vc}, 3, v{va}")
        e(f"v_lshl_add_u32 v{vTR1[0]}, v{vg}, 12, v{va}"); e(f"v_xor_b32 v{vTR1[1]}, 32, v{vTR1[0]}")
        e(f"v_add_u32 v{vTR2[0]}, v3, v{va}"); e(f"v_xor_b32 v{vTR2[1]}, 32, v{vTR2[0]}")
        e(f"v_xor_b32 v{va}, s{sp}, v2"); e(f"v_lshl_add_u32 v{va}, v{va}, 5, v3"); e(f"v_lshl_add_u32 v{va}, v{vr}, 6, v{va}"); e(f"v_lshl_add_u32 v{vTRh}, v{vc}, 3, v{va}")
        e(f"s_mul_i32 s{sT[2]}, s{sW}, 768"); e(f"v_lshl_add_u32 v{va}, v{vLane}, 4, s{sT[2]}"); e(f"v_mov_b32 v{vb}, 0x7ff00000")
        e(f"v_cmp_gt_u32 vcc, 48, v{vLane}"); e(f"v_cndmask_b32 v{vREC}, v{vb}, v{va}, vcc")
        e(f"s_lshl_b32 s{sT[2]}, s{sp}, 13"); e(f"s_lshl_b32 s{sT[3]}, s{sW}, 11"); e(f"s_add_u32 s{sT[2]}, s{sT[2]}, s{sT[3]}"); e(f"s_add_u32 s{sT[2]}, s{sT[2]}, {HB}")
        e(f"v_lshl_add_u32 v{vHW[0]}, v{vLane}, 4, s{sT[2]}"); e(f"v_xor_b32 v{vHW[1]}, 2048, v{vHW[0]}")
        e(f"v_lshlrev_b32 v3, 12, v{vg}"); e(f"v_lshl_add_u32 v3, v{vr}, 8, v3")
        e(f"v_lshl_add_u32 v2, v2, 2, v{vr}"); e(f"v_lshlrev_b32 v2, 5, v2")
        e(f"v_add_u32 v{va}, s{odd}, v{vc}"); e(f"v_lshlrev_b32 v{va}, 3, v{va}")
        for T, cst in ((0, 0), (1, 32), (3, 80), (4, 112), (5, 160), (6, 192)):
            e(f"v_add_u32 v{vb}, {cst}, v{va}"); e(f"v_xad_u32 v{TB3+T}, v{vb}, v2, v3")
        e(f"s_lshl_b32 s{sT[2]}, s{odd}, 3"); e(f"s_add_u32 s{sT[2]}, s{sT[2]}, 64"); e(f"v_xad_u32 v{TB3+2}, s{sT[2]}, v2, v3")
        e(f"v_and_b32 v{vb}, 1, v{vc}"); e(f"v_mul_u32_u24 v{vb}, 80, v{vb}"); e(f"s_add_u32 s{sT[2]}, s{sT[2]}, 80"); e(f"v_add_u32 v{vb}, s{sT[2]}, v{vb}"); e(f"v_xad_u32 v{TB3+7}, v{vb}, v2, v3")
        e(f"v_lshlrev_b32 v3, 4, v{vLane}")
        e(f"s_mul_i32 s{sG}, s{sJ}, 576"); e(f"s_add_u32 s{sG}, s{sG}, 4096")
        e(f"s_mul_i32 s{sD}, s{sJ}, {288*1152}"); e(f"s_add_u32 s{sD}, s{sD}, 4096")
        e(f"s_cmp_eq_u32 s{odd}, 0")
        e(f"s_cselect_b32 s{sT[2]}, 512, 0"); e(f"s_cselect_b32 s{sT[3]}, 0, 64"); e(f"s_cselect_b32 s{sT[4]}, {256*1152}, 0"); e(f"s_cselect_b32 s{sT[5]}, 0, {32*1152}")
        e(f"s_add_u32 s{sGh}, s{sG}, s{sT[2]}"); e(f"s_add_u32 s{sG}, s{sG}, s{sT[3]}"); e(f"s_add_u32 s{sDh}, s{sD}, s{sT[4]}"); e(f"s_add_u32 s{sD}, s{sD}, s{sT[5]}")
        e(f"s_mul_i32 s{sO}, s{sJ}, {36*1152}"); e(f"s_add_u32 s{sO}, s{sO}, 4096")
        e(f"s_lshl_b32 s{sT[2]}, s{sMT}, 2"); e(f"s_add_u32 s{sT[2]}, s{sT[2]}, s{sW}"); e(f"s_mul_i32 s{sT[2]}, s{sT[2]}, {9*9216}")
        e(f"s_add_u32 s{sPG}, s{sG}, s{sT[2]}"); e(f"s_add_u32 s{sPGh}, s{sGh}, s{sT[2]}")
        e(f"s_lshr_b32 s{sT[2]}, s2, 3"); e(f"s_lshl_b32 s{sT[2]}, s{sT[2]}, 2"); e(f"s_add_u32 s{sT[2]}, s{sT[2]}, s{sW}")
        e(f"s_and_b32 s{sT[3]}, s2, 7")
        e(f"s_mul_i32 s{sPD}, s{sT[3]}, {576*1152}"); e(f"s_lshl_b32 s{sT[4]}, s{sT[2]}, 11"); e(f"s_add_u32 s{sPD}, s{sPD}, s{sT[4]}"); e(f"s_add_u32 s{sPD}, s{sPD}, 4096")
        e(f"s_mul_i32 s{sPO}, s{sT[3]}, {72*1152}"); e(f"s_add_u32 s{sPO}, s{sPO}, s{sT[4]}"); e(f"s_add_u32 s{sPO}, s{sPO}, 4096")
        e(f"s_cmp_lt_u32 s{sT[2]}, 41"); e(f"s_cselect_b32 s{sPO}, s{sPO}, 0x7ff00000")
        e(f"s_mul_i32 s{sT[3]}, s{sT[3]}, 144"); e(f"s_and_b32 s{sT[3]}, s{sT[3]}, -128"); e(f"s_mul_i32 s{sT[2]}, s{sT[2]}, {14*1152}")
        e(f"s_add_u32 s{sPT}, s{sT[2]}, s{sT[3]}"); e(f"s_add_u32 s{sPT}, s{sPT}, 4096")
        e(f"v_lshrrev_b32 v2, 1, v{vLane}"); e("v_min_u32 v2, 13, v2"); e("v_mul_u32_u24 v2, 1152, v2"); e(f"v_and_b32 v{vPFg}, 1, v{vLane}"); e(f"v_lshl_add_u32 v2, v{vPFg}, 7, v2")
        e(f"v_mov_b32 v5, v2")
        e(f"v_min_u32 v{vPFg}, 8, v{vLane}"); e(f"v_mul_u32_u24 v{vPFg}, 9216, v{vPFg}"); e(f"v_lshlrev_b32 v{vPFd}, 5, v{vLane}")
        e(f"s_mul_i32 s{sT[2]}, s{sW}, {8*9216}"); e(f"s_add_u32 s{sG}, s{sG}, s{sT[2]}"); e(f"s_lshl_b32 s{sT[2]}, s{sT[2]}, 1"); e(f"s_add_u32 s{sGh}, s{sGh}, s{sT[2]}")
        e(f"s_mul_i32 s{sT[2]}, s{sW}, 9216"); e(f"s_add_u32 s{sD}, s{sD}, s{sT[2]}"); e(f"s_add_u32 s{sDh}, s{sDh}, s{sT[2]}"); e(f"s_add_u32 s{sO}, s{sO}, s{sT[2]}")
        e(f"s_mul_i32 s{sP}, s{sJ}, {PSTRIDE_J}"); e(f"s_mul_i32 s{sT[2]}, s{sMT}, {PSTRIDE_M}"); e(f"s_add_u32 s{sP}, s{sP}, s{sT[2]}"); e(f"s_add_u32 s{sP}, s{sP}, {PBASE-HB}")
        e(f"s_mul_i32 s{sREC}, s{sJ}, {16*3072}"); e(f"s_add_u32 s{sREC}, s{sREC}, {RECB}")
        c0 = -2.0 * math.sqrt(2.0 / math.pi) * math.log2(math.e); c1 = c0 * 0.044715
        al = -((-c1) ** (1.0 / 3.0)) if s.alpha else 1.0
        s.al = al
        e(f"s_mov_b32 s{sK}, {f32(c0/al if s.alpha else c0/c1)}"); e(f"s_mov_b32 s{sC1}, {f32(al*al if s.alpha else c1)}")
        e(f"s_mov_b32 s{sL2E}, {f32(math.log2(math.e)/al)}"); e(f"s_mov_b32 s{sIA}, {f32(1.0/al)}"); e(f"s_mov_b32 s{sEPS}, {f32(1e-6)}")
        e(f"s_mov_b32 s{sMK}, 0x000f000f"); e(f"s_mov_b32 s{sMK+1}, 0x000f000f"); e(f"s_mov_b32 s{sM1}, 0xff00ff00"); e(f"s_mov_b32 s{sM1+1}, 0xff00ff00")
        e(f"s_mov_b32 s{sMG}, 0xffff"); e(f"s_mov_b32 s{sMG+1}, 0")
        e(f"s_mov_b32 s{sT[2]}, 0x3f803f80")
        e(f"s_lshl_b32 s{sFLG}, s{sMT}, 4"); e(f"s_add_u32 s{sFLG}, s{sFLG}, s{sJ}"); e(f"s_lshl_b32 s{sFLG}, s{sFLG}, 2"); e(f"s_add_u32 s{sFLG}, s{sFLG}, s{sW}")
        e(f"s_lshl_b32 s{sFLG}, s{sFLG}, 7"); e(f"s_add_u32 s{sFLG}, s{sFLG}, {FLAGB}")
        for q in range(4): e(f"v_mov_b32 v{PQ+q}, 0")
        e(f"v_mov_b32 v{PQ+4}, {ZQ}"); e(f"ds_write_b128 v{PQ+4}, {R(PQ,4)}")
        bx = []
        for a in range(s.xfirst, 4):
            bx += [I(x) for x in xloads(a)]
            if a == s.qpfa and s.wpf: bx.append(I(f"buffer_load_dword v{vXW}, v5, {srd(sQKV)}, s{sPT} offen"))
        bw = []
        for si in range(4):
            bw += s.dma_items(si)
            if si == 1 and s.wpf: bw += s.pf_gu(0)
        def pop(q):
            while q:
                x = q.pop(0); e(x)
                if x.kind == 'vm': break
        tick = [0]
        def bgstep():
            if bx: pop(bx); return
            tick[0] += 1
            if tick[0] % s.wrate == 0: pop(bw)
        L = WIN + 8
        S1, S2, MU, RS = PQ + 4, PQ + 5, PQ + 6, PQ + 8
        F = s.F
        wr_txt = lambda a, b: f"ds_write_b128 v{vXW2+(a&1)}, {R(xreg(a,b),4)} offset:{(b%5)*4096+(a>>1)*2048}"
        rd_txt = lambda lt, t: f"ds_read_b128 {XN(lt, t)}, v{TB5+(lt>>1)*2+(t&1)} offset:{((t>>1)%5)*4096+(lt&1)*2048+(t&1)*1024}"
        s.pstamp()
        for a in range(4):
            while any(x.kind == 'vm' and (x.wr & {f"v{xreg(a,8)}"}) for x in bx): pop(bx)
            e(f"v_mov_b32 v{S1}, 0"); e(f"v_mov_b32 v{S2}, 0")
            for b in range(9):
                for q in range(4):
                    x = xreg(a, b) + q
                    e(f"v_dot2c_f32_bf16 v{S1}, s{sT[2]}, v{x}"); e(f"v_dot2c_f32_bf16 v{S2}, v{x}, v{x}")
                    if q == 0 and (bx or (b & 1)): bgstep()
            for m in ("quad_perm:[1,0,3,2]", "quad_perm:[2,3,0,1]", "row_half_mirror"):
                e(f"v_add_f32_dpp v{S1}, v{S1}, v{S1} {m} row_mask:0xf bank_mask:0xf")
                e(f"v_add_f32_dpp v{S2}, v{S2}, v{S2} {m} row_mask:0xf bank_mask:0xf")
            e(f"v_mul_f32 v{S1}, {f32(1/576)}, v{S1}"); e(f"v_mul_f32 v{S2}, {f32(1/576)}, v{S2}")
            e(f"v_fma_f32 v{S2}, -v{S1}, v{S1}, v{S2}"); e(f"v_max_f32 v{S2}, 0, v{S2}")
            e(f"v_cvt_pk_bf16_f32 v{S1}, v{S1}, v{S2}")
            e(f"v_lshlrev_b32 v{MU}, 16, v{S1}"); e(f"v_and_b32 v{S2}, 0xffff0000, v{S1}")
            e(f"v_add_f32 v{S2}, {f32(1e-5)}, v{S2}"); e(f"v_cvt_pk_bf16_f32 v{S2}, v{S2}, v{S2}"); e(f"v_and_b32 v{S2}, 0xffff0000, v{S2}")
            e(f"v_sqrt_f32 v{S2}, v{S2}"); e(f"v_cvt_pk_bf16_f32 v{S2}, v{S2}, v{S2}"); e(f"v_and_b32 v{S2}, 0xffff0000, v{S2}")
            e(f"v_rcp_f32 v{RS}, v{S2}")
            if s.alpha: e(f"v_mul_f32 v{RS}, {f32(al)}, v{RS}")
            e(f"v_mul_f32 v{MU}, v{MU}, v{RS}"); e(f"v_sub_f32 v{MU}, 0, v{MU}")
            s.pstamp()
            for b in range(9):
                jit = (a == 3 and b >= s.jit0)
                em = (lambda t_, b=b: F.add(t_, 0, f'ln{b}')) if jit else e
                x = xreg(a, b); t = L + (b & 1) * 8
                for q in range(4):
                    em(f"v_lshlrev_b32 v{t+2*q}, 16, v{x+q}"); em(f"v_and_b32 v{t+2*q+1}, 0xffff0000, v{x+q}")
                for q in range(4):
                    if not jit: em(f"v_pk_fma_f32 {R(t+2*q,2)}, {R(t+2*q,2)}, {R(RS,2)}, {R(MU,2)} op_sel_hi:[1,0,0]")
                    else:
                        for h in range(2): em(f"v_fma_f32 v{t+2*q+h}, v{t+2*q+h}, v{RS}, v{MU}")
                for q in range(4):
                    em(f"v_cvt_pk_bf16_f32 v{x+q}, v{t+2*q}, v{t+2*q+1}")
                if a < 3 and b < 5: e(wr_txt(a, b))
                if a == 2 and b < 5:
                    for t2 in (2 * b, 2 * b + 1): e(rd_txt(0, t2))
                if a == 3:
                    g = f'ln{b}'
                    if b < 5:
                        em(wr_txt(3, b))
                        if jit: F.add(Mark(f'xw{b}'), 0, g)
                        else: e(Mark(f'xw{b}'))
                        for t2 in (2 * b, 2 * b + 1): em(rd_txt(1, t2))
                    else:
                        for a_ in range(4): F.add(wr_txt(a_, b), 0, g, barrier_dep=f'xr{b-5}')
                        F.add(Mark(f'xw{b}'), 0, g)
                        for t2 in (2 * b, 2 * b + 1):
                            for lt in range(2): F.add(rd_txt(lt, t2), 0, g)
                    own = [it for it in F.items if it['group'] == g and it['ins'].kind == 'dsr']
                    for t2 in (2 * b, 2 * b + 1):
                        for lt in (2, 3): F.add(rd_txt(lt, t2), 0, f'lp{b}', barrier_dep=f'xw{b}')
                    F.add(Mark(f'xr{b}'), 0, f'lp{b}', after=own if b < 8 else [it for it in F.items if it['ins'].kind == 'dsr'])
                if not jit and (b >= s.xn0 or not bx): bgstep()
            s.pstamp()
        while bw and not all(x.tag not in [f"st{k}" for k in range(s.npre)] for x in bw): pop(bw)
        s.dq0 = bw
        s.flag(0, PQ, None, direct=True); e(Mark('init', vm='fl0'))
        e(f"s_lshr_b32 s{sROT}, s{sROT}, 1"); e(f"s_lshl_b32 s{sROT}, s{sROT}, 10")
        s.stamp()
        def hooks(name):
            if name == f"stage{s.atts}":
                n0 = len(s.F.items); s.attn_finish()
                s.F.items[:] = s.F.items[n0:] + s.F.items[:n0]
            if name == "stage5":
                for k in range(2): s.F.add(f"global_load_dwordx4 {R(WIN+4*k,4)}, v3, s[{sTB}:{sTB+1}] offset:{k*1024}", 0, 'tb')
            if name in ("stage0", "stage2", "stage5", "stage9"): s.pstamp()
            if name == "stage8":
                e(f"s_and_b32 s{sSIG}, s{sMT}, 7"); e(f"s_cmp_eq_u32 s{sW}, 0"); e(f"s_cselect_b32 s{sSIG}, s{sSIG}, 0xff")
            if name.startswith("stage") and 9 <= int(name[5:]) < 17:
                k = int(name[5:]) - 9
                assert 'init' in s.gates
                e(f"s_cmp_eq_u32 s{sSIG}, {k}"); e(f"s_cbranch_scc1 L_sig{k}"); e(f"L_sigb{k}:")
                s.tail += [f"L_sig{k}:", "s_mov_b64 exec, 1", f"global_atomic_inc v{vLane}, v{vHW[0]}, s[20:21] sc1", "s_mov_b64 exec, -1", f"s_branch L_sigb{k}"]
            if name.startswith("stage"): return
            if name == "ph0_done":
                s.stamp()
                s.ph0_epilogue()
                F = s.F
                F.add(f"v_lshlrev_b32 v{WIN+23}, 4, v{vLane}", 0, 'tb')
                for k in range(2):
                    F.add(f"global_load_dwordx4 {R(TB3+4*k,4)}, v{WIN+23}, s[{sTB}:{sTB+1}] offset:{2048+k*1024}", 0, 'tb')
                F.add(f"s_lshl_b32 s{sT[5]}, s{sW}, 10", 0, 'tb'); F.add(f"s_add_u32 s{sT[5]}, s{sT[5]}, 4096", 0, 'tb')
                F.add(f"v_add_u32 v{WIN+23}, s{sT[5]}, v{WIN+23}", 0, 'tb')
                F.add(f"global_load_dwordx4 {R(TB3+8,4)}, v{WIN+23}, s[{sTB}:{sTB+1}]", 0, 'tb')
            elif name.startswith("blk"):
                b = int(name[3])
                s.stamp(name)
                s.gelu(b)
                if b == 3:
                    e(f"s_and_b32 s{sH0}, s{sW}, 1"); e(f"s_lshl_b32 s{sH1}, s{sH0}, 13"); e(f"s_lshl_b32 s{sH0}, s{sH0}, 3")
                    for k in range(2):
                        e(f"v_subrev_u32 v{vHR[k]}, s{sH1}, v{vHW[k]}"); e(f"v_add_u32 v{vHR[2+k]}, 65536, v{vHR[k]}"); e(f"v_add_u32 v{vHH[k]}, s{sH0}, v{vHR[2+k]}")
            elif name.startswith("hs") or name == "half_done":
                k = int(name[2]) if name.startswith("hs") else 4
                if k == 4:
                    s.stamp()
                    e(f"v_bfe_u32 v{vK16}, v{vLane}, 2, 2"); e(f"v_mul_u32_u24 v{vK16}, 1152, v{vK16}"); e(f"v_and_b32 v{vTRh}, 3, v{vLane}"); e(f"v_lshl_add_u32 v{vK16}, v{vTRh}, 3, v{vK16}")
                    e(f"s_and_b32 s{sH0}, s{sW}, 1"); e(f"s_lshl_b32 s{sH0}, s{sH0}, 6"); e(f"s_add_u32 s{sH0}, s{sH0}, {W10}"); e(f"v_add_u32 v{vK16}, s{sH0}, v{vK16}")
                    s.gelu(4)
                n0 = len(s.F.items)
                for ks in {0: [0, 1, 2, 3], 1: [4, 5, 6, 7], 2: [9, 10], 3: [], 4: [8]}[k]:
                    gate = f"h{ks//2}" if ks <= 8 else 'o'
                    for lt in range(4):
                        b = vHR[(lt >> 1) + (2 if ks >= 8 else 0)]
                        o = (ks % 8) * 8192 + (lt & 1) * 1024
                        s.F.add(f"ds_read_b128 {XN(lt,ks)}, v{b} offset:{o}" if ks < 10 else f"ds_read_b64 {XN(lt,ks,2)}, v{b} offset:{o}", 0, f'hr{ks}', barrier_dep=gate)
                s.F.items[:] = s.F.items[n0:] + s.F.items[:n0]
            elif name.startswith("nb"):
                n = int(name[2])
                if n == s.NO - 1: s.stamp()
                n0 = len(s.F.items); s.p2_epilogue(n)
                ne = sum(1 for it in s.F.items[:n0] if it['group'].startswith('ep'))
                old = s.F.items[:n0]
                s.F.items[:] = [it for it in old if it['group'].startswith('ep')] + s.F.items[n0:] + [it for it in old if not it['group'].startswith('ep')]
                if n == 2:
                    F = s.F; g = 'rs'
                    for x in [f"s_mov_b32 s{sOUT}, s18", f"s_mov_b32 s{sOUT+1}, s19", f"s_mov_b32 s{sOUT+2}, {2048*1152}", f"s_mov_b32 s{sOUT+3}, 0x20000",
                              f"s_mul_i32 s{sRB}, s{sMT}, {PSTRIDE_M}", f"s_lshl_b32 s{sXB}, s{sJ}, 10", f"s_add_u32 s{sRB}, s{sRB}, s{sXB}", f"s_add_u32 s{sRB}, s{sRB}, {PBASE}",
                              f"s_and_b32 s{sXB}, s{sJ}, 7", f"s_lshl_b32 s{sFB}, s{sMT}, 3", f"s_add_u32 s{sXB}, s{sXB}, s{sFB}", f"s_mul_i32 s{sXB}, s{sXB}, {16*1152}",
                              f"s_lshr_b32 s{sFB}, s{sJ}, 3", f"s_lshl_b32 s57, s{sFB}, 6", f"s_add_u32 s{sXB}, s{sXB}, s57",
                              f"s_bfe_u32 s57, s{sJ}, 0x10002", f"s_lshl_b32 s57, s57, 1", f"s_add_u32 s{sFB}, s{sFB}, s57",
                              f"s_lshl_b32 s57, s{sMT}, 6", f"s_add_u32 s{sFB}, s{sFB}, s57", f"s_lshl_b32 s{sFB}, s{sFB}, 7", f"s_add_u32 s{sFB}, s{sFB}, {FLAGB}",
                              f"v_and_b32 v{vFP}, 15, v{vLane}", f"v_lshlrev_b32 v{vFP}, 9, v{vFP}"]: F.add(x, 0, g)
                if n == s.r0at: s.rr_filler(0, 4)
                if n == s.r4at: s.rr_filler(4, 2)
            if not s.overlap: s.flush()
        s.run_backbone(hooks)
        s.flush(lambda it: it['group'].startswith('ep'))
        s.stamp()
        n = 0
        while n < s.drainwork:
            rdy = [it for it in s.F.items if it['ins'].kind in ('valu', 'salu') and s.F.ready(it, s.gates)]
            if not rdy: break
            e(s.F.take(rdy[0])); s.F.clock += 1; n += 1
        e(Wait(vm='p8')); s.flag(10, vT[1], None, direct=True)
        s.flush()
        r6 = s.rr(6, 2); r8 = s.rr(8, 1)
        ld8, chk8 = s.poll(r8['name'], r8['load'], r8['vf'], r8['need'], [], None, direct=True, sleep=2)
        e(ld8)
        for x in r6['pre'] + r8['pre']: e(x)
        e(chk8)
        s.stamp()
        for x in r6['loads'] + r8['loads']: e(x)
        for x in r6['fin'] + r8['fin']: e(x)
        if s.stamps: e(Wait(allvm=True))
        s.stamp()
        if s.stamps:
            e(f"s_add_u32 s22, s22, {STAMP}"); e("s_addc_u32 s23, s23, 0"); e("s_lshl_b32 s3, s2, 7"); e(f"s_lshl_b32 s16, s{sW}, 15"); e("s_add_u32 s3, s3, s16"); e("v_mov_b32 v1, s3")
            for k in range(s.nst):
                e(f"v_mov_b32 v2, s{STP[k]}"); e(f"v_mov_b32 v3, s{STP[k]+1}"); e(f"global_store_dwordx2 v1, v[2:3], s[22:23] offset:{8*k}"); e("s_nop 1")
            e("s_waitcnt vmcnt(0)")
        e("L_endA:"); e("s_endpgm")

    def dumpH(s):
        e = s.e
        e(f"v_lshlrev_b32 v5, 4, v{vLane}"); e(f"s_mul_i32 s{sT[4]}, s{sW}, 22528"); e(f"v_add_u32 v5, s{sT[4]}, v5"); e(f"v_add_u32 v6, {HB}, v5")
        e(f"s_mul_i32 s{sT[4]}, s2, 90112"); e(f"s_add_u32 s{sT[4]}, s{sT[4]}, {64<<20}")
        e(f"s_mov_b32 s{sWS+2}, {128<<20}")
        for k in range(22):
            e(f"ds_read_b128 {R(ACC[0],4)}, v6 offset:{k*1024}")
            e(f"buffer_store_dwordx4 {R(ACC[0],4)}, v5, {srd(sWS)}, s{sT[4]} offen"); e(f"s_add_u32 s{sT[4]}, s{sT[4]}, 1024"); e("s_nop 4")
        e(f"s_mov_b32 s{sWS+2}, {WSREC}")

def kernelB(al, stamps):
    S = []; e = lambda x: S.append(I(x) if isinstance(x, str) else x)
    NWV = 9
    e("s_cmp_ge_u32 s2, 256"); e("s_cbranch_scc1 L_endB")
    if stamps: e("s_memrealtime s[44:45]")
    e("s_load_dwordx2 s[4:5], s[0:1], 0"); e("s_load_dwordx2 s[6:7], s[0:1], 56"); e("s_load_dwordx2 s[8:9], s[0:1], 72")
    e("v_lshrrev_b32 v1, 6, v0"); e("v_readfirstlane_b32 s3, v1"); e("v_and_b32 v0, 63, v0")
    e(f"s_mul_i32 s10, s2, {NWV}"); e("s_add_u32 s10, s10, s3")
    e("s_lshr_b32 s11, s2, 4")
    e("s_mul_i32 s12, s11, 144"); e("s_sub_u32 s12, s10, s12")
    e("s_and_b32 s13, s12, 7"); e("s_lshr_b32 s14, s12, 3")
    e("s_lshl_b32 s15, s10, 10"); e(f"s_add_u32 s15, s15, {PBASE}")
    e("v_lshlrev_b32 v2, 4, v0")
    e("s_lshl_b32 s16, s11, 3"); e("s_add_u32 s16, s16, s13"); e(f"s_mul_i32 s16, s16, {16*1152}"); e("s_lshl_b32 s17, s14, 6"); e("s_add_u32 s16, s16, s17")
    e("v_and_b32 v3, 15, v0"); e("v_mul_u32_u24 v3, 1152, v3"); e("v_lshrrev_b32 v4, 4, v0")
    e("v_lshl_add_u32 v5, v4, 3, v3")
    e("v_and_b32 v6, 1, v4"); e("v_lshrrev_b32 v4, 1, v4"); e("v_lshl_add_u32 v3, v6, 5, v3"); e("v_lshl_add_u32 v3, v4, 4, v3")
    e(Wait(alllg=True))
    e("s_mov_b32 s20, s8"); e("s_mov_b32 s21, s9"); e(f"s_mov_b32 s22, {WSREC}"); e("s_mov_b32 s23, 0x20000")
    e("s_mov_b32 s24, s4"); e("s_mov_b32 s25, s5"); e(f"s_mov_b32 s26, {2048*1152}"); e("s_mov_b32 s27, 0x20000")
    e("s_mov_b32 s28, s6"); e("s_mov_b32 s29, s7"); e(f"s_mov_b32 s30, {2048*1152}"); e("s_mov_b32 s31, 0x20000")
    for i in range(16):
        e(f"buffer_load_dwordx4 {R(24+4*i,4)}, v2, s[20:23], s15 offen")
        if i < 15: e(f"s_add_u32 s15, s15, {PSTRIDE_J}")
    e("buffer_load_dwordx2 v[20:21], v5, s[24:27], s16 offen"); e("buffer_load_dwordx2 v[22:23], v5, s[24:27], s16 offen offset:32")
    for i in range(16):
        for q in range(4):
            x = 24 + 4 * i + q
            if i == 0:
                e(f"v_lshlrev_b32 v{8+2*q}, 16, v{x}"); e(f"v_and_b32 v{9+2*q}, 0xffff0000, v{x}")
            else:
                t = 16 + 2 * (q & 1)
                e(f"v_lshlrev_b32 v{t}, 16, v{x}"); e(f"v_and_b32 v{t+1}, 0xffff0000, v{x}")
                e(f"v_pk_add_f32 {R(8+2*q,2)}, {R(8+2*q,2)}, {R(t,2)}")
    e(f"s_mov_b32 s18, {f32(1.0/(al*al))}")
    for q in range(4):
        e(f"v_lshlrev_b32 v16, 16, v{20+q}"); e(f"v_and_b32 v17, 0xffff0000, v{20+q}")
        e(f"v_fma_f32 v{8+2*q}, v{8+2*q}, s18, v16"); e(f"v_fma_f32 v{9+2*q}, v{9+2*q}, s18, v17")
        e(f"v_cvt_pk_bf16_f32 v{24+q}, v{8+2*q}, v{9+2*q}")
    e("v_permlane16_swap_b32 v24, v26"); e("v_permlane16_swap_b32 v25, v27")
    e("buffer_store_dwordx4 v[24:27], v3, s[28:31], s16 offen")
    if stamps:
        e("s_waitcnt vmcnt(0)"); e("s_memrealtime s[46:47]"); e("s_waitcnt lgkmcnt(0)")
        e("s_cmp_lg_u32 s3, 0"); e("s_cbranch_scc1 L_endB")
        e(f"s_add_u32 s8, s8, {STAMP+0x100000}"); e("s_addc_u32 s9, s9, 0"); e("s_lshl_b32 s17, s2, 4"); e("v_mov_b32 v1, s17")
        e("v_mov_b32 v4, s44"); e("v_mov_b32 v5, s45"); e("v_mov_b32 v6, s46"); e("v_mov_b32 v7, s47")
        e("global_store_dwordx4 v1, v[4:7], s[8:9]"); e("s_waitcnt vmcnt(0)")
    e("L_endB:"); e("s_endpgm")
    return S

def kd(name, nv, acc, ns):
    return f""".p2align 6
.amdhsa_kernel {name}
  .amdhsa_next_free_vgpr {nv}
  .amdhsa_next_free_sgpr {ns}
  .amdhsa_accum_offset {acc}
  .amdhsa_group_segment_fixed_size 0
  .amdhsa_kernarg_size 80
  .amdhsa_user_sgpr_count 2
  .amdhsa_user_sgpr_kernarg_segment_ptr 1
  .amdhsa_system_sgpr_workgroup_id_x 1
.end_amdhsa_kernel
"""

def generate(**kw):
    g = Gen(**kw); g.kernelA()
    ab = kw.get('abl', 0)
    if ab:
        S2 = []; seen_bb = False
        for x in g.S:
            t = getattr(x, 'text', '')
            if (ab & 1) and t.startswith('buffer_store') and x.tag != 'rec': continue
            if (ab & 2) and ' lds' in t and x.tag and int(x.tag[2:]) >= 13: continue
            if (ab & 4) and t == 's_barrier' and seen_bb: continue
            if (ab & 8) and t.startswith('buffer_store') and x.tag != 'rec': x = I(t.replace(' sc1', ''), x.tag)
            if (ab & 16) and '16x16x16' in t: continue
            if (ab & 32) and t.startswith('ds_read_b64_tr') and seen_bb: continue
            if (ab & 64) and x.kind in ('valu', 'trans', 'dsw') and seen_bb and 'readfirstlane' not in t and not t.startswith('v_mov') and not t.startswith('v_add_u32') and not t.startswith('v_min_u32') and not t.startswith('v_sub') and not t.startswith('v_lshl'): continue
            if 'global_atomic' in t: seen_bb = True
            S2.append(x)
        g.S = S2
    A, auto, nn = postpass(g.S, verbose=bool(kw.get('verbose')))
    nm = sum(1 for x in A if x.kind == 'mfma')
    print(f"kernelA: {len(A)} instrs, {nm} mfma, auto waits {auto}, nops {nn}, extra barriers {g.nextra}, late reads {g.late}, overflow {g.novf}, flushed {g.flushlog} nst {g.nst}", file=sys.stderr)
    o = [HDR.rstrip()]
    o.append("; @launch grid=(256,1,1) block=(256,1,1) lds=163840")
    o.append('.amdgcn_target "amdgcn-amd-amdhsa--gfx950"'); o.append(".text")
    o += [f".globl {KN}_kernel", ".p2align 8", f".type {KN}_kernel,@function", f"{KN}_kernel:"]
    o += [("    " + x.text if x.kind != 'label' else x.text) for x in A if x.text]
    o += [("    " + x if not x.endswith(":") else x) for x in g.tail]
    o += [".p2align 7", ".type L_tbl,@object", "L_tbl:"]
    for G in build_table():
        for l in G: o.append(".long " + ", ".join("0x%x" % v for v in l))
    o.append(f".size L_tbl, {NGRP*1024}")
    o.append("L_codeend:")
    o.append('.section .rodata,"a"')
    o.append(kd(KN + "_kernel", 512, 256, 102))
    return "\n".join(o) + "\n"

if __name__ == "__main__":
    import argparse
    ap = argparse.ArgumentParser()
    ap.add_argument("-o", default="k.s")
    ap.add_argument("--alpha", action="store_true"); ap.add_argument("--chain", type=int, default=1)
    ap.add_argument("--stamps", action="store_true"); ap.add_argument("--dump"); ap.add_argument("--nooverlap", action="store_true")
    ap.add_argument("-D", type=int, default=4)
    ap.add_argument("-k", action="append", default=[])
    a = ap.parse_args()
    open(a.o, "w").write(generate(alpha=a.alpha, chain=a.chain, stamps=a.stamps, dump=a.dump, overlap=not a.nooverlap, D=a.D, **{x.split('=')[0]: int(x.split('=')[1]) for x in a.k}))
```

```python
import sys, math, struct
from asmlib import *

KN = "parallel_sum__linear_attn_block__geglu_ffn__prompt"
HDR = open("cdna_kernels/" + KN + ".s.ref").read().split("; Override launch")[0]

def f32(x): return "0x%08x" % struct.unpack("<I", struct.pack("<f", x))[0]

RING = 0; HB = 65536; OB = HB + 73728; MISC = OB + 16384
KVS = OB
KVT = OB + 12288
SUMB = MISC
ZQ = MISC + 3072
W10 = MISC + 3104
PBASE = 1 << 20
PSTRIDE_J = 2359296; PSTRIDE_M = 147456
RECB = 48 << 20
FLAGB = 56 << 20
WSREC = 64 << 20
STAMP = 128 << 20

vLane = 0
vT = [1, 2, 3, 4]
vDMA0 = 4
TB0 = 8;  vDMA1, vDMAh, vDMA2, vXW = 8, 9, 10, 11
TB1 = 12; vTR1 = (12, 13); vTRh = 14; vREC = 15
TB2 = 16; vTR2 = (16, 17); vHW = (18, 19)
TB3 = 20
TB5 = 28
PQ = 32
XV = 44
ACC = (76, 140)
FR = 204; NF = 6
WIN = 228
vT2 = [5, 6, 7, 252, 253, 254, 255]
sX, sQKV, sWO, sWG, sWU, sWD, sWS = 24, 28, 32, 36, 40, 44, 48
sW, sJ, sMT, sM0, sQ, sG, sGh, sD, sDh, sO, sP, sREC = 52, 53, 54, 55, 56, 57, 58, 59, 60, 61, 62, 63
sK, sC1, sL2E, sIA, sEPS, sA2 = 64, 69, 66, 67, 68, 69
sSO = [70, 71, 72, 73]
sMK, sM1, sMG = 74, 76, 78
sPG, sPGh, sPD, sPO, sPT = 0, 1, 3, 10, 11
sSPIN, sFLG, sSIG, sOUT = 16, 17, 16, 28
sRB, sXB, sFB = 64, 66, 68
vFP = 14
sH0, sH1 = 3, 56
sROT, sXO = 65, 87
vPFg, vPFd = 6, 7
vHR = (12, 13, 6, 7); vHH = (8, 11); vK16 = 9
sTB = 80
sT = [82, 83, 84, 85, 86, 87]
STP = [88, 90, 92, 94, 96, 98, 100, 4, 6, 8, 12, 14]

def R(b, n, k='v'): return f"{k}[{b}:{b+n-1}]" if n > 1 else f"{k}{b}"
def srd(b): return f"s[{b}:{b+3}]"
def XN(lt, t, n=4):
    return R((lt * 16 + t) * 4, n, 'a') if t < 16 else R(XV + (lt * 2 + t - 16) * 4, n)

def build_table():
    G = [[None] * 64 for _ in range(8)]
    for l in range(64):
        g = l >> 4; i = l & 15
        def kvaddr(kx, vy):
            if vy == 0: row = i
            elif vy == 1: row = 16 + i
            else: row = 28 + i if 4 <= i <= 9 else None
            quad = g if kx == 0 else (4 + g if kx == 1 else (8 if g == 0 else None))
            if row is None or quad is None: return KVS + 3072 + l * 16
            head = (1 if row >= 18 else 0) if row < 36 else row - 36
            qq = quad - 4 * head
            if not 0 <= qq <= 4: return KVS + 3072 + l * 16
            return KVS + (row * 5 + qq) * 16
        ka = [kvaddr(kx, vy) for kx, vy in KVPROD]
        G[0][l] = ka[:4]; G[1][l] = ka[4:]
        def ga(row, quad):
            if row is None: return ZQ
            head = (1 if row >= 18 else 0) if row < 36 else row - 36
            qq = quad - 4 * head
            if not 0 <= qq <= 4: return ZQ
            return SUMB + (row * 5 + qq) * 16
        rowD = 36 + (i & 1); row0 = i; row1 = 16 + i; row2 = 32 + i if i < 4 else None
        f1 = lambda row: ga(row, 8) if g == 0 else ZQ
        G[2][l] = [ga(rowD, g), ga(rowD, 4 + g), f1(rowD), ga(row0, g)]
        G[3][l] = [ga(row0, 4 + g), ga(row1, g), ga(row1, 4 + g), f1(row1)]
        for w in range(4):
            n = 48 * w + l
            row_n, qq_n = divmod(n, 5)
            head_n = (1 if row_n >= 18 else 0) if row_n < 36 else row_n - 36
            mlo = 0 if (head_n == 1 and qq_n == 0) else 0xffffffff
            mhi = 0 if (head_n == 0 and qq_n == 4) else 0xffffffff
            G[4 + w][l] = [ga(row2, 4 + g), f1(row2), mlo, mhi]
    return G
KVPROD = [(0, 0), (0, 1), (0, 2), (1, 0), (1, 1), (1, 2), (2, 1), (2, 2)]
NGRP = 8

class Mark:
    kind = 'label'; op = 'label'; text = ''; tag = None; isdot = False; isdpp = False; isperm = False; wide = False
    def __init__(self, gate, vm=None): self.gate = gate; self.vm = vm; self.rd = set(); self.wr = set()

class Raw:
    kind = 'sctl'; op = 'raw'; tag = None; isdot = False; isdpp = False; isperm = False; wide = False
    def __init__(self, ins, rd=(), wr=()):
        self.ins = [I(x) if isinstance(x, str) else x for x in ins]; self.text = 'RAW'
        self.rd = set(rd); self.wr = set(wr)
        for x in self.ins: self.rd |= x.rd; self.wr |= x.wr

def fin_old(y, issued, allld):
    return False

class Gen:
    def __init__(s, alpha=False, chain=1, stamps=False, D=4, dump=None, overlap=True, **kw):
        s.alpha = alpha; s.chain = chain; s.stamps = stamps; s.D = D; s.dump = dump; s.overlap = overlap
        s.S = []
        s.F = Filler()
        s.gates = set(); s.pending_marks = []
        s.vmorder = []
        s.nst = 0; s.stnames = []
        s.tail = []
        s.nextra = 0; s.flushlog = []; s.late = 0; s.bdelay = 5; s.ddslack = 4; s.xfirst = 1; s.bgrate = 1; s.jit0 = 3; s.wpf = 1; s.npre = 1; s.cyc = 0; s.dswgap = 4; s.jb0 = 9; s.jb1 = 9; s.jb2 = 5; s.order = 1; s.qpfs = 1; s.lnlead = 52; s.gpfs = 9; s.wa0 = 0; s.xpf = 0; s.gpf0 = 0; s.mp = 0; s.pahead = 14; s.win = 16; s.kpre = 8; s.stprio = 1; s.pollit = {}; s.lastld = None; s.ldsp = 30; s.plat = 250; s.nov = 2; s.vmlat = 500; s.norr = 0; s.NX = 0; s.fdelay = 260; s.r0st = 56; s.rb4 = ACC[0] + 32; s.pdelay = 300; s.drainwork = 180; s.flagit = {}; s.oflag = ''; s.r0at = 4; s.r4at = 6; s.stcl = 0; s.w64 = 1; s.qpfa = 9; s.wrate = 2; s.xn0 = 0; s.pst = 0; s.rot = 3; s.popN = 12; s.popM = 1; s.dlm = 44; s.defth = 3; s.novf = 0; s.NO = 2; s.stsp = 14; s.dmagap = 7; s.fvmgap = 1; s.fvmreset = 0; s.atts = 30; s.pfoff = -2; s.pfd = 20; s.touch = 0
        for k, v in kw.items(): setattr(s, k, v)
    def e(s, x, tag=None):
        ins = I(x, tag) if isinstance(x, str) else x
        if isinstance(ins, Raw):
            for y in ins.ins: s.e(y)
            return
        if isinstance(ins, Mark):
            s.pending_marks.append(ins); return
        if ins.kind == 'vm': s.vmorder.append(ins.tag)
        s.S.append(ins)
    def pstamp(s):
        if s.stamps and s.pst == 1: s.stamp('p', True, True)
    def stamp(s, name='', nowait=False, pro=False):
        if s.stamps and (bool(s.pst) == pro or (s.nst == 0 and s.pst < 2)) and s.nst < 12:
            r = STP[s.nst]; s.e(f"{'s_memtime' if s.cyc else 's_memrealtime'} s[{r}:{r+1}]"); s.nst += 1; s.stnames.append(name)
            if not nowait: s.e(Wait(alllg=True))
    def barrier(s, vmtag=None):
        s.e(Wait(vm=vmtag, alllg=True)); s.e("s_barrier")
        cov = -1
        if vmtag is not None:
            for k, t in enumerate(s.vmorder):
                if t == vmtag: cov = k
        keep = []
        for m in s.pending_marks:
            ok = True
            if m.vm is not None:
                last = max(k for k, t in enumerate(s.vmorder) if t == m.vm)
                ok = last <= cov
            if ok: s.gates.add(m.gate)
            else: keep.append(m)
        s.pending_marks = keep

    def make_stages(s):
        st = []
        s.phases = ['q', 0, 1, 2, 3] if s.order == 0 else [0, 'q', 1, 2, 3]
        s.pst0 = {ph: 9 * n for n, ph in enumerate(s.phases)}
        s.pst0[4] = 45
        for ph in s.phases:
            for k in range(9):
                if ph == 'q': st.append([(sQKV, vDMA0, sQ, (64 * k + 32 * (q >> 1) + 4 * (q & 1)) * 3456) for q in range(4)])
                else: st.append([((sWG, sWU)[q & 1], vDMA1, sG, ph * 128 + (64 * k + 32 * (q >> 1)) * 9216) for q in range(4)])
        for k in range(5):
            st.append([((sWG, sWU)[q & 1], vDMAh, sGh, (128 * k + 64 * (q >> 1)) * 9216) for q in range(4 if k < 4 else 2)])
        NO = s.NO
        seg = []
        early = [0, 1, 2, 3, 4, 5]
        for nb in range(NO): seg.append((nb, early))
        for nb in range(NO): seg.append((nb, [6, 7]))
        for nb in range(NO): seg.append((nb, [9, 8, 10]))
        for nb in range(NO, 9): seg.append((nb, [0, 1, 2, 3, 4, 5, 6, 7, 9, 8, 10]))
        s.seg = seg
        units = []
        for nb, kss in seg:
            for ks in kss:
                if ks < 8: units.append((sWD, vDMA2, sD, nb * 128 + 32 * ks * 1152))
                elif ks == 8: units.append((sWD, vDMA2, sDh, nb * 128))
                elif ks == 9: units.append((sWO, vDMA2, sO, nb * 128))
        for k in range(0, len(units), 4): st.append(units[k:k + 4])
        s.stages = st
        s.P1 = 9; s.PH = 45; s.P2 = 50
    def slot(s, si):
        x = si - (len(s.stages) - s.NX)
        return RING + (si % 4) * 16384 if x < 0 else HB + x * 16384
    def dma_items(s, si):
        out = [I(f"s_add_u32 m0, s{sM0}, {s.slot(si)}")]
        for q, (sr, vo, sb, c) in enumerate(s.stages[si]):
            so = sSO[q]
            cc = c - q * 1024
            out.append(I(f"s_add_u32 s{so}, s{sb}, {cc}" if cc >= 0 else f"s_sub_u32 s{so}, s{sb}, {-cc}"))
            out.append(I(f"buffer_load_dwordx4 v{vo}, {srd(sr)}, s{so} offen offset:{q*1024} lds", tag=f"st{si}"))
        return out

    def pf_gu(s, b):
        base = f"s_add_u32 s{sPT}, s{sPG}, {b*128}" if b < 4 else f"s_mov_b32 s{sPT}, s{sPGh}"
        return [I(base), I(f"buffer_load_dword v{vXW}, v{vPFg}, {srd(sWG)}, s{sPT} offen"), I(f"buffer_load_dword v{vXW}, v{vPFg}, {srd(sWU)}, s{sPT} offen")]
    def pf_items(s, si):
        out = []
        if si == s.pfd + 15:
            out += [I(f"s_lshl_b32 s{sPT}, s{sW}, 10"), I(f"s_add_u32 m0, s{sPT}, {W10}"), I(f"s_mul_i32 s{sPT}, s{sW}, {1024-9216}"), I(f"s_add_u32 s{sPT}, s{sPT}, s{sO}"),
                    I(f"s_add_u32 s{sPT}, s{sPT}, {32*1152}"), I(f"v_lshlrev_b32 v{vPFd}, 4, v{vLane}"),
                    I(f"buffer_load_dwordx4 v{vPFd}, {srd(sWO)}, s{sPT} offen lds"),
                    I(f"s_mov_b32 m0, {W10+3584}"), I(f"s_mul_i32 s{sPT}, s{sW}, {-9216}"), I(f"s_add_u32 s{sPT}, s{sPT}, s{sO}"), I(f"s_add_u32 s{sPT}, s{sPT}, {32*1152+3584}"),
                    I(f"buffer_load_dwordx4 v{vPFd}, {srd(sWO)}, s{sPT} offen lds")]
        if not s.wpf: return out
        for b in range(1, 5):
            if si == s.pst0[b] - 9 + s.pfoff: out += s.pf_gu(b)
        if s.order == 1 and si == s.qpfs: out += [I(f"buffer_load_dword v{vXW}, v5, {srd(sQKV)}, s{sT[4]} offen")]
        for k in range(3):
            if si == s.pfd + 4 * k:
                out += [I(f"s_add_u32 s{sPT}, s{sPD}, {k*128*(2048<<s.mp)}"), I(f"buffer_load_dword v{vXW}, v{vPFd}, {srd(sWD)}, s{sPT} offen")]
        if si == s.pfd + 12: out += [I(f"buffer_load_dword v{vXW}, v{vPFd}, {srd(sWO)}, s{sPO} offen")]
        return out

    def make_backbone(s):
        frags = []; groups = []
        pool0 = [FR + 4 * k for k in range(NF)] + ([124 + 4 * k for k in range(4)] if s.order == 0 else [WIN + 8 + 4 * k for k in range(4)])
        pool1 = [FR + 4 * k for k in range(NF)]
        pool2 = pool1
        cnt = {}
        s.freg = []; s.fprev = []; last = {}
        def addfrag(si, base, offs, static=False):
            pool = pool0 if s.isq(si) else pool1
            k = cnt.get(id(pool), 0); cnt[id(pool)] = k + 1
            reg = min(pool, key=lambda r: last.get(r, -1))
            s.freg.append(reg); s.fprev.append(last.get(reg, -1)); last[reg] = len(frags)
            frags.append((si, base, [(0 if static else s.slot(si) % 65536) + o for o in offs])); return len(frags) - 1
        M = "v_mfma_f32_16x16x32_bf16"
        def emit_chain(items, hook=None):
            fids = [it[0] for it in items]
            ms = []
            for a in range(len(items[0][1])):
                for k, it in enumerate(items):
                    ms.append((k,) + it[1][a])
            groups.append((fids, ms, hook))
        ch = s.chain
        for ph in s.phases:
            for k in range(9):
                si = s.pst0[ph] + k
                nq = 8 if ph == 'q' else 4
                order = [(kk, q) for kk in range(2) for q in range(nq)] if ch == 1 else [(None, q) for q in range(nq)]
                for kk, q in order:
                    its = []
                    for k2 in ([kk] if ch == 1 else [0, 1]):
                        t = 2 * k + k2
                        if ph == 'q':
                            f = addfrag(si, TB3 + q, [(2 * k2) * 1024, (2 * k2 + 1) * 1024])
                            its.append((f, [(s.acc('q') + (q * 2 + lt) * 4, XN(lt, t), t == 0, q >= 3, 32) for lt in range(2)]))
                        else:
                            tau, mat = q >> 1, q & 1
                            f = addfrag(si, vTR1[tau], [(2 * k2 + mat) * 1024, (2 * k2 + mat) * 1024 + 512])
                            its.append((f, [(s.acc(ph) + (q * 4 + lt) * 4, XN(lt, t), t == 0, False, 32) for lt in range(4)]))
                    emit_chain(its)
            groups.append(([], [], "ph0_done" if ph == 'q' else f"blk{ph}_done"))
        for k in range(5):
            si = s.PH + k
            nk = 4 if k < 4 else 2
            order = [([kk], mat) for kk in range(nk) for mat in range(2)] if ch == 1 else [([k0, k0 + 1], mat) for k0 in range(0, nk, 2) for mat in range(2)]
            for kks, mat in order:
                its = []
                for k2 in kks:
                    o = (k2 & 1) * 8192 + ((k2 >> 1) * 2 + mat) * 1024
                    f = addfrag(si, vTRh, [o, o + 256])
                    t = 4 * k + k2
                    its.append((f, [(ACC[0] + (mat * 4 + lt) * 4, XN(lt, t), t == 0, False, 32) for lt in range(4)]))
                emit_chain(its)
            if k < 4: groups.append(([], [], f"hs{k}_done"))
        groups.append(([], [], "half_done"))
        U = 0
        for nb, kss in s.seg:
            k = 0
            while k < len(kss):
                ksl = [kss[k]]
                if ch == 2 and k + 1 < len(kss) and kss[k] < 10 and kss[k + 1] < 10 and U % 2 == 0: ksl.append(kss[k + 1])
                for tau in range(2):
                    its = []
                    for d, ks in enumerate(ksl):
                        if ks < 10:
                            si = s.P2 + (U + d) // 4; u = (U + d) % 4
                            f = addfrag(si, vTR2[tau], [u * 1024, u * 1024 + 8192])
                        else:
                            f = addfrag(s.P2 + (U - 1) // 4, vK16, [nb * 128 + tau * 32], static=True)
                        its.append((f, [(s.p2acc(nb) + (lt * 2 + tau) * 4, XN(lt, ks, 4 if ks < 10 else 2), ks == 0, False, 32 if ks < 10 else 16) for lt in range(4)]))
                    emit_chain(its)
                U += sum(1 for ks in ksl if ks < 10); k += len(ksl)
            if kss[-1] == 10: groups.append(([], [], f"nb{nb}_done"))
        s.frags = frags; s.groups = groups

    def isq(s, si): return s.pst0['q'] <= si < s.pst0['q'] + 9
    def acc(s, ph):
        if ph == 4: return ACC[0]
        return ACC[(s.phases.index(ph) + 1) & 1]
    def p2acc(s, nb):
        order = [ACC[0] + 32, XV, ACC[0]]
        return order[nb % 3]
    def fragreg(s, f): return s.freg[f]
    def read_items(s, f):
        si, base, offs = s.frags[f]
        regs = {f"v{s.fragreg(f)+k}" for k in range(4)}
        assert not any(((it['ins'].rd | it['ins'].wr) & regs) or (f"v{base}" in it['ins'].wr) for it in s.F.items), ("frag reg conflict", f)
        return [I(f"ds_read_b64_tr_b16 {R(s.fragreg(f) + 2 * k, 2)}, v{base} offset:{o}") for k, o in enumerate(offs)]

    def flush(s, pred=None):
        need = []
        seen = set()
        def visit(it):
            if id(it) in seen or it['at'] is not None: return
            seen.add(id(it))
            for d, _ in it['deps']: visit(d)
            if it['gate'] is not None and it['gate'] not in s.gates:
                for m in s.F.items:
                    if isinstance(m['ins'], Mark) and m['ins'].gate == it['gate']: visit(m)
        for it in list(s.F.items):
            if pred is None or pred(it): visit(it)
        n = len(seen)
        while True:
            todo = [it for it in s.F.items if id(it) in seen]
            if not todo: break
            rdy = [it for it in todo if s.F.ready(it, s.gates)]
            if rdy:
                s.e(s.F.take(rdy[0])); s.F.clock += 1; continue
            lat = [it for it in todo if (it['gate'] is None or it['gate'] in s.gates) and all(d[0]['at'] is not None for d in it['deps'])]
            if lat: s.F.clock += 1; continue
            assert s.pending_marks, [it['ins'].text for it in todo[:5]]
            vm = [m.vm for m in s.pending_marks if m.vm is not None]
            s.barrier(vm[-1] if vm else None)
            s.nextra += 1
        s.flushlog.append(n)

    def run_backbone(s, hooks):
        nfr = len(s.frags)
        rq = []
        st = dict(nextread=0, cur=-1, lastread_gap=-99, lastvm=-99, opened=0, lastdsw=-99)
        dq = []
        mlist = []
        for gi, (fids, ms, hook) in enumerate(s.groups):
            if hook: mlist.append(('hook', hook)); continue
            for k, m in enumerate(ms): mlist.append(('m', fids, m, k == 0, k == len(ms) - 1))
        firstuse = {}; lastuse = {}
        gap = 0
        hg = {}; fop = {}
        for ent in mlist:
            if ent[0] == 'm':
                for f in ent[1]:
                    firstuse.setdefault(f, gap); lastuse[f] = gap
                fop.setdefault(('half_done' in hg, ent[2][2]), gap)
                gap += 1
            else: hg[ent[1]] = gap
        hn = lambda ph: hg['ph0_done'] if ph == 'q' else hg[f'blk{ph}_done']
        nxt_end = lambda ph: hn(s.phases[s.phases.index(ph) + 1])
        dl = {'ph0': nxt_end('q') - 4, 'q': nxt_end('q') - 2, 'gelu0': nxt_end(0) - 2, 'gelu1': nxt_end(1) - 2, 'gelu2': nxt_end(2) - 2,
              'gelu3': fop[(True, XN(0, 6))] - s.dlm, 'gelu4': fop[(True, XN(0, 8))] - s.dlm, 'att': fop[(True, XN(0, 9))] - s.dlm}
        for b in range(9):
            dl[f'ln{b}'] = fop[(False, XN(0, 2 * b))] - (12 if s.order == 0 else s.lnlead)
            d1 = min(fop[(False, XN(2, 2 * b))] - 10, 288 + 40)
            dl[f'lp{b}'] = min(d1, fop[(False, XN(1, 2 * (b + 5)))] - 72 - (0 if s.order == 0 else s.lnlead)) if b < 4 else d1
        cost = lambda it: 0 if it['ins'].kind in ('label', 'salu', 'wait') else (2 if it['ins'].kind in ('trans', 'dsw', 'vm', 'sctl', 'mfma') else 1)
        st['def'] = 0.0
        def open_stage(si):
            X0 = len(s.stages) - s.NX
            if si >= X0:
                if s.slot(si) % 65536 == 0:
                    for t_ in range(2): s.e(f"v_add_u32 v{vTR2[t_]}, 65536, v{vTR2[t_]}")
                st['cur'] = si; hooks(f"stage{si}")
                return
            while any(x.tag in [f"st{k}" for k in range(si + 2)] for x in dq): s.e(dq.pop(0))
            fine = (2 <= s.pst < 99 and s.pst <= si < s.pst + 7) or (s.pst >= 100 and s.pst - 100 <= si < s.pst - 94)
            if fine: s.stamp('p', True, True)
            s.barrier(f"st{si}")
            if fine: s.stamp('p', True, True)
            st['cur'] = si; st['opened'] = gap
            if 'hfree' in s.gates and s.xq and (si + 3 < X0):
                left = X0 - 3 - si
                for _ in range(-(-len(s.xq) // left)): dq.extend(s.xq.pop(0))
            if si + 3 < X0 and si >= 1: dq.extend(s.dma_items(si + 3))
            if si + 3 == X0 - 1: assert not s.xq
            dq.extend(s.pf_items(si))
            hooks(f"stage{si}")
        def vmgap():
            n = sum(1 for x in dq if x.kind == 'vm')
            left = 30 - (gap - st['opened'])
            return max(2, min(s.dmagap, left // max(n, 1)))
        def can_read(f, gap):
            p = s.fprev[f]
            return p < 0 or lastuse[p] <= gap
        gap = -1
        s.xq = []
        for si in range(len(s.stages) - s.NX, len(s.stages)):
            d = s.dma_items(si)
            s.xq.append(d[:5])
            if len(d) > 5: s.xq.append([I(d[0].text)] + d[5:])
        open_stage(0)
        dq.extend(s.dq0)
        while st['nextread'] < 4:
            for x in s.read_items(st['nextread']): s.e(x)
            st['nextread'] += 1
        s.e(Wait(regs=[f"v{s.fragreg(f)+k}" for f in mlist[0][1] for k in range(4)]))
        gap = -1
        LA = s.D * 4
        for idx, ent in enumerate(mlist):
            if ent[0] == 'hook':
                hooks(ent[1]); continue
            gap += 1
            _, fids, (k, acc, other, first, swap, K), isfirst, islast = ent
            fr = s.fragreg(fids[k])
            n = 4 if K == 32 else 2
            A, B = R(fr, n), other
            if swap: A, B = B, A
            C = "0" if first else R(acc, 4)
            op = "v_mfma_f32_16x16x32_bf16" if K == 32 else "v_mfma_f32_16x16x16_bf16"
            mi = I(f"{op} {R(acc,4)}, {A}, {B}, {C}")
            if any((it['ins'].wr & (mi.rd | mi.wr)) or (it['ins'].rd & mi.wr) for it in s.F.items):
                s.flush(lambda it: bool((it['ins'].wr & (mi.rd | mi.wr)) or (it['ins'].rd & mi.wr)))
            s.e(mi)
            s.F.clock += 2
            sc = True; v = 2
            def refill():
                nonlocal sc, v
                f = st['nextread']
                if rq or f >= nfr or not can_read(f, gap) or firstuse[f] - gap > LA: return
                si = s.frags[f][0]
                if si > st['cur'] and si >= len(s.stages) - s.NX:
                    open_stage(si)
                elif si > st['cur']:
                    if gap - st['lastread_gap'] < s.bdelay and firstuse[f] - gap > 8: return
                    if v < 2: return
                    open_stage(si); sc = False; v = 0
                rq.extend((x, f) for x in s.read_items(f)); st['nextread'] += 1
            nxt = None
            if islast:
                nxt = next((x for x in mlist[idx + 1:] if x[0] == 'm'), None)
            if nxt is not None:
                mx = max(nxt[1])
                while st['nextread'] <= mx or (rq and rq[0][1] <= mx):
                    if not rq:
                        f = st['nextread']; si = s.frags[f][0]
                        if si > st['cur']: open_stage(si)
                        rq.extend((x, f) for x in s.read_items(f)); st['nextread'] += 1
                    s.e(rq.pop(0)[0]); v -= 1; s.late += 1
                regs = [f"v{s.fragreg(f)+q}" for f in nxt[1] for q in range(4)]
                for m2 in mlist[idx + 1: idx + 9]:
                    if m2[0] == 'm' and m2[1] is nxt[1]: regs += list(I(f"v_mov_b32 v0, {m2[2][2]}").rd)
                s.e(Wait(regs=regs)); sc = False
            refill()
            slack = (firstuse[rq[0][1]] - gap) if rq else 99
            if dq and dq[0].kind == 'valu' and v > 0 and not rq:
                s.e(dq.pop(0)); v -= 1; sc = False
            if sc and dq and dq[0].kind == 'salu':
                s.e(dq.pop(0)); sc = False
                if dq and dq[0].kind == 'salu' and v == 2 and not rq:
                    s.e(dq.pop(0)); v -= 1
            elif v == 2 and sc and s.stprio and slack > 9 and any(it['ins'].kind == 'vm' and it['group'].startswith('ep') and s.F.ready(it, s.gates) for it in s.F.items):
                it = next(it for it in s.F.items if it['ins'].kind == 'vm' and it['group'].startswith('ep') and s.F.ready(it, s.gates))
                s.e(s.F.take(it)); v = 0; s.F.clock += 2
            elif v == 2 and sc and dq and dq[0].kind == 'vm' and slack > 9 and gap - st['lastvm'] >= vmgap():
                s.e(dq.pop(0)); v = 0; st['lastvm'] = gap
            elif sc:
                for it in s.F.items:
                    if it['ins'].kind in ('salu', 'label', 'wait') and s.F.ready(it, s.gates):
                        s.e(s.F.take(it)); sc = False; break
            if v == 2 and rq:
                s.e(rq.pop(0)[0]); v -= 1; st['lastread_gap'] = gap
                pair = bool(rq) and s.isq(s.frags[rq[0][1]][0])
                refill()
                if rq and v == 1 and (pair or firstuse[rq[0][1]] - gap < LA - s.ddslack):
                    s.e(rq.pop(0)[0]); v -= 1
            rate = 0.0; acc_c = 0
            for gname, d in sorted(((g_, d_) for g_, d_ in dl.items()), key=lambda x: x[1]):
                c_ = sum(cost(it) for it in s.F.items if it['group'] == gname)
                if c_ == 0: continue
                acc_c += c_
                rate = max(rate, acc_c / max(d - gap, 1))
            st['def'] = min(st['def'] + rate, 6.0) if rate > 0 else 0.0
            extra = 0
            while v > 0 or (st['def'] >= s.defth and extra < 4):
                cand = None
                rdy = [it for it in s.F.items if s.F.ready(it, s.gates)]
                if v == 2:
                    big = [it for it in rdy if it['ins'].kind in ('trans', 'sctl', 'mfma', 'dsr') or (it['ins'].kind == 'dsw' and gap - st['lastdsw'] >= (s.dswgap if '128' in it['ins'].op else (s.dswgap + 1) // 2)) or (it['ins'].kind == 'vm' and sc and gap - st['lastvm'] >= s.fvmgap)]
                    if big: cand = big[0]
                elif s.S[-1].kind == 'dsr':
                    big = [it for it in rdy if it['ins'].kind == 'dsr']
                    if big: cand = big[0]
                if cand is None and st['def'] >= s.defth:
                    any_ = [it for it in rdy if it['ins'].kind in ('valu', 'salu', 'label', 'wait', 'trans', 'dsw', 'mfma', 'dsr') and it['group'] in dl and not (it['ins'].kind == 'dsw' and gap - st['lastdsw'] < 2)]
                    if any_: cand = any_[0]
                if cand is None and v > 0:
                    sm = [it for it in rdy if it['ins'].kind in ('valu', 'salu', 'label', 'wait')]
                    if sm: cand = sm[0]
                if cand is None: break
                kd = cand['ins'].kind
                if kd == 'vm' and s.fvmreset: st['lastvm'] = gap
                if kd == 'dsw': st['lastdsw'] = gap
                if cand['group'] in dl: st['def'] -= cost(cand)
                s.e(s.F.take(cand))
                if kd in ('label',): continue
                c = 2 if kd in ('trans', 'dsw', 'vm', 'sctl', 'mfma') else 1
                if c > v: extra += c - max(v, 0); s.novf += c - max(v, 0)
                v -= c; s.F.clock += c
            st['def'] = max(st['def'], -4.0)
            s.F.clock += max(v, 0)
        while dq: s.e(dq.pop(0))

    def phi(s, r, t, grp, nb):
        F = s.F
        F.add(f"v_mul_f32 v{t}, s{sL2E}, v{r}", nb, grp)
        F.add(f"v_min_f32 v{t}, 0, v{t}", nb, grp)
        F.add(f"v_exp_f32 v{t}, v{t}", nb, grp)
        if s.alpha: F.add(f"v_fma_f32 v{r}, v{r}, s{sIA}, v{vT2[6]}", nb, grp)
        else: F.add(f"v_add_f32 v{r}, s{sEPS}, v{r}", nb, grp)
        F.add(f"v_max_f32 v{r}, s{sEPS}, v{r}", nb, grp)
        F.add(f"v_add_f32 v{r}, v{r}, v{t}", nb, grp)

    def ph0_epilogue(s):
        F = s.F; nb = F.clock + 10; g = 'ph0'
        A = s.acc('q')
        tmp = vT + vT2[3:6]; ti = 0
        if s.alpha: F.add(f"v_mov_b32 v{vT2[6]}, s{sEPS}", 0, g)
        reg = lambda T, lt, r: A + (T * 2 + lt) * 4 + r
        for T in (3, 4):
            for q in range(8):
                s.phi(reg(T, 0, q), tmp[ti % len(tmp)], g, nb); ti += 1
        if s.alpha:
            for T in (5, 6):
                for q in range(8): F.add(f"v_mul_f32 v{reg(T,0,q)}, s{sIA}, v{reg(T,0,q)}", nb, g)
        for q in range(8):
            r = reg(7, 0, q); t = tmp[ti % len(tmp)]; ti += 1
            t2 = WIN + 8 + q
            if s.alpha: F.add(f"v_mul_f32 v{t2}, s{sIA}, v{r}", nb, g)
            else: F.add(f"v_mov_b32 v{t2}, v{r}", nb, g)
            s.phi(r, t, g, nb)
            F.add(f"v_cndmask_b32 v{r}, v{t2}, v{r}, s[{sMK}:{sMK+1}]", nb, g)
            F.add(f"v_cndmask_b32 v{r}, v{r}, 1.0, s[{sM1}:{sM1+1}]", nb, g)
        for T in (3, 4, 5, 6, 7):
            for q in range(4): F.add(f"v_cvt_pk_bf16_f32 v{reg(T,0,q)}, v{reg(T,0,2*q)}, v{reg(T,0,2*q+1)}", nb, g)
        kf = {0: reg(3, 0, 0), 1: reg(4, 0, 0), 2: reg(7, 0, 0)}
        vf = {0: reg(5, 0, 0), 1: reg(6, 0, 0), 2: reg(7, 0, 0)}
        dst = [reg(3, 1, 0), reg(4, 1, 0), reg(5, 1, 0), reg(6, 1, 0), reg(7, 1, 0), WIN + 8, WIN + 12, WIN + 16]
        for n, (kx, vy) in enumerate(KVPROD):
            F.add(f"v_mfma_f32_16x16x32_bf16 {R(dst[n],4)}, {R(kf[kx],4)}, {R(vf[vy],4)}, 0", nb, g)
        for n in range(8):
            F.add(f"v_add_u32 v{WIN+n}, s{sM0}, v{WIN+n}", 0, g)
            F.add(f"ds_write_b128 v{WIN+n}, {R(dst[n],4)}", nb, g, barrier_dep='xr8')
        F.add(Mark('kvs'), nb, g)
        t = WIN + 22
        F.add(f"v_min_u32 v{t}, 3056, v{vREC}", 0, g)
        F.add(f"v_add_u32 v{t}, {KVS}, v{t}", 0, g)
        for w in range(4):
            F.add(f"ds_read_b128 {R(WIN+4*w,4)}, v{t} offset:{w*4096}", 0, g, barrier_dep='kvs')
        for w in (1, 3):
            for q in range(4): F.add(f"v_add_f32 v{WIN+4*(w-1)+q}, v{WIN+4*(w-1)+q}, v{WIN+4*w+q}", 0, g)
        for q in range(4): F.add(f"v_add_f32 v{WIN+q}, v{WIN+q}, v{WIN+8+q}", 0, g)
        F.add(f"s_mul_i32 s{sT[0]}, s{sMT}, 3072", 0, g)
        F.add(f"s_add_u32 s{sT[0]}, s{sT[0]}, s{sREC}", 0, g)
        F.add(I(f"buffer_store_dwordx4 {R(WIN,4)}, v{vREC}, {srd(sWS)}, s{sT[0]} offen sc1", tag='rec'), 0, g)
        F.add(Mark('recdone', vm='rec'), 0, g)
        s.flag(1, WIN + 20, g, 'recdone')
        for T in (0, 1, 2):
            for q in range(8):
                s.phi(reg(T, 0, q), tmp[ti % len(tmp)], 'q', nb); ti += 1
        for lt in range(2):
            for h in range(2):
                F.add(f"v_cvt_pk_bf16_f32 v{PQ+lt*6+h}, v{reg(2,lt,2*h)}, v{reg(2,lt,2*h+1)}", nb, 'q')
                F.add(f"v_cvt_pk_bf16_f32 v{PQ+lt*6+2+h}, v{reg(0,lt,2*h)}, v{reg(0,lt,2*h+1)}", nb, 'q')
                F.add(f"v_cvt_pk_bf16_f32 v{PQ+lt*6+4+h}, v{reg(1,lt,2*h)}, v{reg(1,lt,2*h+1)}", nb, 'q')

    def flag(s, val, tmp, g, gate=None, direct=False):
        ins = [I(f"v_mov_b32 v{tmp}, {val}"), I(f"buffer_store_dword v{tmp}, off, {srd(sWS)}, s{sFLG} sc1", tag=f'fl{val}')]
        if direct:
            for x in ins: s.e(x)
            return None
        s.F.add(ins[0], 0, g)
        return s.F.add(ins[1], 0, g, barrier_dep=gate)

    def poll(s, name, load, vflag, need, rd, g, direct=False, after=None, sleep=16):
        chk = [f"v_cmp_gt_u32 vcc, {need}, v{vflag}", f"s_cbranch_vccnz L_sp_{name}", f"L_bk_{name}:"]
        s.tail += [f"L_sp_{name}:", f"s_mov_b32 s{sSPIN}, 0", f"L_lp_{name}:", f"s_sleep {sleep}", load, "s_waitcnt vmcnt(0)",
                   f"s_add_u32 s{sSPIN}, s{sSPIN}, 1", f"s_cmp_gt_u32 s{sSPIN}, 0x40000", f"s_cbranch_scc1 L_bk_{name}",
                   f"v_cmp_gt_u32 vcc, {need}, v{vflag}", "s_nop 1", f"s_cbranch_vccnz L_lp_{name}", f"s_branch L_bk_{name}"]
        raw = Raw(chk, rd=rd, wr=[f"v{vflag}", f"s{sSPIN}", "scc"])
        if direct: return I(load), raw
        it = s.F.add(I(load), 0, g)
        for p in (after or []): it['deps'].append((p, s.pdelay))
        return s.F.add(raw, 0, g)

    def rr_addr(s, n):
        va, vx, t = (TB3, TB3 + 1, TB3 + 4) if n == 2 else (TB3 + 2, TB3 + 3, TB3 + 4)
        sh = {2: 1, 1: 2}[n]
        pre = [f"s_and_b32 s57, s{sW}, {(1<<sh)-1}", f"s_lshl_b32 s57, s57, 6", f"v_add_u32 v{va}, s57, v{vLane}", f"v_lshlrev_b32 v{va}, {4-sh}, v{va}",
               f"v_bfe_u32 v{vx}, v{va}, 4, 4", f"v_mul_u32_u24 v{vx}, 1152, v{vx}", f"v_lshrrev_b32 v{t}, 8, v{va}", f"v_lshl_add_u32 v{vx}, v{t}, 3, v{vx}",
               f"v_bfe_u32 v{t}, v{va}, 3, 1", f"v_lshl_add_u32 v{vx}, v{t}, 5, v{vx}"]
        if n == 1: pre += [f"v_and_b32 v{t}, 4, v{va}", f"v_add_u32 v{vx}, v{t}, v{vx}"]
        return pre
    def rr(s, b0, pk=False):
        n = 2 if b0 < 8 else 1
        r = b0 // 2
        LB = [ACC[1], ACC[1] + 32, ACC[0] + 32, XV, FR][r]
        SB = [WIN, WIN + 8, WIN + 16, PQ, TB3 + 8][r]
        X = SB + 2 * n; vf = SB + 3 * n
        sL, sXo = [(57, 58), (63, 67), (sT[4], sT[5]), (36, 37), (38, 39)][r]
        va, vx = (TB3, TB3 + 1) if n == 2 else (TB3 + 2, TB3 + 3)
        T = (TB3 + 4, TB3 + 5, TB3 + 6, TB3 + 7)
        sh = {2: 1, 1: 2}[n]; sfx = {2: "x2", 1: ""}[n]
        pre = [f"s_lshr_b32 s{sL}, s{sW}, {sh}", f"s_add_u32 s{sL}, s{sL}, {b0}", f"s_lshl_b32 s{sXo}, s{sL}, 7", f"s_add_u32 s{sXo}, s{sXo}, s{sXB}",
               f"s_lshl_b32 s{sL}, s{sL}, 14", f"s_add_u32 s{sL}, s{sL}, s{sRB}"]
        load = f"buffer_load_dword v{vf}, v{vFP}, {srd(sWS)}, s{sFB} offen sc1"
        loads = [f"buffer_load_dword{sfx} {R(X,n)}, v{vx}, {srd(sX)}, s{sXo} offen"]
        for k in range(16):
            loads.append(f"buffer_load_dword{sfx} {R(LB+n*k,n)}, v{va}, {srd(sWS)}, s{sL} offen sc1")
            if k < 15: loads.append(f"s_add_u32 s{sL}, s{sL}, {PSTRIDE_J}")
        fin = []
        for k in range(16):
            for q in range(n):
                x = LB + n * k + q
                if k == 0: fin += [f"v_lshlrev_b32 v{SB+2*q}, 16, v{x}", f"v_and_b32 v{SB+2*q+1}, 0xffff0000, v{x}"]
                elif pk:
                    t = T[2 * ((k * n + q) % 2)]
                    fin += [f"v_lshlrev_b32 v{t}, 16, v{x}", f"v_and_b32 v{t+1}, 0xffff0000, v{x}", f"v_pk_add_f32 {R(SB+2*q,2)}, {R(SB+2*q,2)}, {R(t,2)}"]
                else:
                    t = T[(k * n + q) % 4]
                    fin += [f"v_lshlrev_b32 v{t}, 16, v{x}", f"v_and_b32 v{x}, 0xffff0000, v{x}", f"v_add_f32 v{SB+2*q}, v{SB+2*q}, v{t}", f"v_add_f32 v{SB+2*q+1}, v{SB+2*q+1}, v{x}"]
        c = f32(1.0 / (s.al * s.al))
        for q in range(n):
            t = T[q]
            fin += [f"v_lshlrev_b32 v{t}, 16, v{X+q}", f"v_and_b32 v{X+q}, 0xffff0000, v{X+q}",
                    f"v_fmamk_f32 v{SB+2*q}, v{SB+2*q}, {c}, v{t}", f"v_fmamk_f32 v{SB+2*q+1}, v{SB+2*q+1}, {c}, v{X+q}",
                    f"v_cvt_pk_bf16_f32 v{X+q}, v{SB+2*q}, v{SB+2*q+1}"]
        fin += [f"buffer_store_dword{sfx} {R(X,n)}, v{vx}, {srd(sOUT)}, s{sXo} offen{s.oflag}"]
        return dict(pre=pre, load=load, vf=vf, need=2 + b0 + n - 1, loads=loads, fin=fin, name=f"r{b0}")

    def rr_poll(s, b0):
        r = s.rr(b0); g = f'rr{b0}'; F = s.F; n0 = len(F.items)
        F.vmlat = s.plat
        s.pollit[b0] = s.poll(r['name'], r['load'], r['vf'], r['need'], [f"v{vFP}", f"s{sFB}"], g, after=[s.flagit[b0 + 1]])
        F.items[:] = F.items[n0:] + F.items[:n0]
    def rr_body(s, b0):
        r = s.rr(b0); g = f'rr{b0}'; F = s.F; n0 = len(F.items)
        F.vmlat = s.vmlat
        for x in r['pre']: F.add(x, 0, g)
        for x in r['loads']:
            it = F.add(x, 0, g)
            if it['ins'].kind == 'vm':
                it['gate'] = 'ldok'
                it['deps'].append((s.pollit[b0], 1))
                if s.lastld is not None: it['deps'].append((s.lastld, s.ldsp))
                s.lastld = it
        F.items[:] = F.items[n0:] + F.items[:n0]
        for x in r['fin']: F.add(x, 0, g + 'f')

    def gelu(s, b):
        F = s.F; nb = F.clock + 10; g = f'gelu{b}'
        half = (b == 4)
        A = s.acc(b)
        tmp = (vT if not (b == 0 and s.order == 1) else vT[:3]) + vT2[3:6]; ti = 0
        hg_ = 'xr8' if b == 0 else None
        for lt in range(4):
            for tau in range(1 if half else 2):
                G0 = A + ((tau * 2) * 4 + lt) * 4; U0 = G0 + 16
                for r in range(4):
                    G = G0 + r; U = U0 + r; t = tmp[ti % len(tmp)]; ti += 1
                    F.add(f"v_fma_f32 v{t}, v{G}, v{G}, s{sK}", nb, g)
                    F.add(f"v_mul_f32 v{U}, v{G}, v{U}", nb, g)
                    F.add(f"v_mul_f32 v{G}, v{t}, v{G}", nb, g)
                    if not s.alpha: F.add(f"v_mul_f32 v{G}, s{sC1}, v{G}", nb, g)
                    F.add(f"v_exp_f32 v{G}, v{G}", nb, g)
                    F.add(f"v_add_f32 v{G}, 1.0, v{G}", nb, g)
                    F.add(f"v_rcp_f32 v{G}, v{G}", nb, g)
                    F.add(f"v_mul_f32 v{U}, v{U}, v{G}", nb, g)
                D0 = A + lt * 4
                for h in range(2):
                    F.add(f"v_cvt_pk_bf16_f32 v{D0+tau*2+h}, v{U0+2*h}, v{U0+2*h+1}", nb, g)
                if not half and s.w64:
                    F.add(f"ds_write_b64 v{vHW[lt>>1]}, {R(A+lt*4+tau*2,2)} offset:{b*16384+(lt&1)*1024+tau*8}", nb, g, barrier_dep=hg_)
            if not half:
                if not s.w64: F.add(f"ds_write_b128 v{vHW[lt>>1]}, {R(A+lt*4,4)} offset:{b*16384+(lt&1)*1024}", nb, g, barrier_dep=hg_)
            else:
                F.add(f"ds_write_b64 v{vHH[lt>>1]}, {R(A+lt*4,2)} offset:{(lt&1)*1024}", nb, g)
        F.add(Mark(f'h{b}'), nb, g)

    def attn_finish(s):
        F = s.F; g = 'att'
        W = WIN
        F.add(f"v_mov_b32 v{W+20}, 0", 0, g)
        s.poll('init', f"global_load_dword v{W+21}, v{W+20}, s[20:21] sc1", W + 21, 256, [f"v{W+20}"], g, sleep=64)
        F.add(f"v_and_b32 v{W+20}, 15, v{vLane}", 0, g); F.add(f"v_lshlrev_b32 v{W+20}, 13, v{W+20}", 0, g)
        F.add(f"s_and_b32 s{sT[1]}, s{sFLG}, {~(15<<13) & 0xffffffff}", 0, g)
        s.poll('kv', f"buffer_load_dword v{W+21}, v{W+20}, {srd(sWS)}, s{sT[1]} offen sc1", W + 21, 1, [f"v{W+20}", f"s{sT[1]}"], g)
        for bt in range(4):
            for q in range(4):
                m = bt * 4 + q
                F.add(f"s_add_u32 s{sT[3]}, s{sREC}, {m*3072}", 0, g)
                F.add(I(f"buffer_load_dwordx4 {R(W+4*q,4)}, v{vREC}, {srd(sWS)}, s{sT[3]} offen sc1"), 0, g)
            for q in (0, 2):
                for r in range(4): F.add(f"v_add_f32 v{W+4*q+r}, v{W+4*q+r}, v{W+4*q+4+r}", 0, g)
            for r in range(4):
                if bt == 0: F.add(f"v_add_f32 v{W+16+r}, v{W+r}, v{W+8+r}", 0, g)
                else:
                    F.add(f"v_add_f32 v{W+r}, v{W+r}, v{W+8+r}", 0, g)
                    F.add(f"v_add_f32 v{W+16+r}, v{W+16+r}, v{W+r}", 0, g)
        GA = TB3
        for r in range(4): F.add(f"v_and_b32 v{W+16+r}, v{W+16+r}, v{GA+10+(r>>1)}", 0, g)
        F.add(f"v_min_u32 v{W+20}, 3072+16, v{vREC}", 0, g)
        F.add(f"v_add_u32 v{W+20}, {SUMB}, v{W+20}", 0, g)
        F.add(f"ds_write_b128 v{W+20}, {R(W+16,4)}", 0, g)
        F.add(Mark('sum'), 0, g)
        OUT = W + 12; RC = W + 20
        def tile(lo, hi, f1, name):
            first = True
            if lo is not None: F.add(f"ds_read_b128 {R(W,4)}, v{GA+lo}", 0, g, barrier_dep='sum')
            F.add(f"ds_read_b128 {R(W+4,4)}, v{GA+hi}", 0, g, barrier_dep='sum')
            if f1 is not None: F.add(f"ds_read_b128 {R(W+8,4)}, v{GA+f1}", 0, g, barrier_dep='sum')
            for q in range(4):
                if lo is None and q < 2: F.add(f"v_mov_b32 v{W+q}, 0", 0, g)
                else: F.add(f"v_cvt_pk_bf16_f32 v{W+q}, v{W+2*q}, v{W+2*q+1}", 0, g)
            if f1 is not None:
                for q in range(2): F.add(f"v_cvt_pk_bf16_f32 v{W+8+q}, v{W+8+2*q}, v{W+8+2*q+1}", 0, g)
            for lt in range(2):
                F.add(f"v_mfma_f32_16x16x32_bf16 {R(OUT+4*lt,4)}, {R(W,4)}, {R(PQ+lt*6+2,4)}, 0", 0, g)
                if f1 is not None:
                    F.add(f"v_mfma_f32_16x16x16_bf16 {R(OUT+4*lt,4)}, {R(W+8,2)}, {R(PQ+lt*6,2)}, {R(OUT+4*lt,4)}", 0, g)
        tile(0, 1, 2, 'D')
        for lt in range(2):
            for h in range(2):
                F.add(f"v_add_f32 v{RC+2*lt+h}, s{sEPS}, v{OUT+4*lt+h}", 0, g)
                F.add(f"v_rcp_f32 v{RC+2*lt+h}, v{RC+2*lt+h}", 0, g)
                if s.alpha: F.add(f"v_mul_f32 v{RC+2*lt+h}, s{sA2}, v{RC+2*lt+h}", 0, g)
        ao = vT2[0]
        F.add(f"s_lshl_b32 s{sT[4]}, s{sW}, 13", 0, g)
        F.add(f"s_and_b32 s{sT[4]}, s{sT[4]}, 8192", 0, g)
        F.add(f"s_sub_u32 s{sT[4]}, {9*8192}, s{sT[4]}", 0, g)
        F.add(f"v_add_u32 v{ao}, s{sT[4]}, v{vHW[0]}", 0, g)
        def finish(which, off):
            for lt in range(2):
                for r in range(4):
                    o = OUT + 4 * lt + r
                    if which == 0: rc = RC + 2 * lt
                    elif which == 2 or r >= 2: rc = RC + 2 * lt + 1
                    else:
                        rc = W + 10 + lt
                        if r == 0: F.add(f"v_cndmask_b32 v{rc}, v{RC+2*lt+1}, v{RC+2*lt}, s[{sMG}:{sMG+1}]", 0, g)
                    F.add(f"v_mul_f32 v{o}, v{o}, v{rc}", 0, g)
                for h in range(2): F.add(f"v_cvt_pk_bf16_f32 v{OUT+4*lt+h}, v{OUT+4*lt+2*h}, v{OUT+4*lt+2*h+1}", 0, g)
                F.add(f"ds_write_b64 v{ao}, {R(OUT+4*lt,2)} offset:{off+lt*1024}", 0, g)
        tile(3, 4, None, 'T0'); finish(0, 0)
        tile(5, 6, 7, 'T1'); finish(1, 8)
        tile(None, 8, 9, 'T2'); finish(2, 8192)
        F.add(Mark('o'), 0, g)

    def p2_epilogue(s, nb_):
        F = s.F; nb = F.clock + 10; g = f'ep{nb_}'
        a0 = s.p2acc(nb_)
        so = (sT[(nb_ & 1) * 2], sT[(nb_ & 1) * 2 + 1])
        F.add(f"s_add_u32 s{so[0]}, s{sP}, {nb_*16384}", 0, g)
        F.add(f"s_add_u32 s{so[0]}, s{so[0]}, s{sROT}", 0, g)
        F.add(f"s_xor_b32 s{so[1]}, s{so[0]}, 1024", 0, g)
        if s.stcl and nb_ < 8: F.add(Mark(f'cl{nb_}'), 0, g + 'm')
        prev = None
        for lt in range(4):
            b = a0 + lt * 8
            for q in range(4): F.add(f"v_cvt_pk_bf16_f32 v{b+q}, v{b+2*q}, v{b+2*q+1}", nb, g)
            it = F.add(I(f"buffer_store_dwordx4 {R(b,4)}, v{vHW[lt>>1]}, {srd(sWS)}, s{so[lt&1]} offen sc1", tag=f'p{nb_}'), nb, g,
                       barrier_dep=(f'cl{nb_}' if s.stcl and nb_ < 8 else None))
            if prev is not None and nb_ < 8: it['deps'].append((prev, s.stsp))
            prev = it
        if nb_ in (1, 3, 5):
            wt = F.add(Wait(vm=[f'p{k}' for k in range(nb_ + 1)]), 0, g + 'f')
            for x in F.items:
                if x['ins'].kind == 'vm' and x['group'].startswith('ep'): wt['deps'].append((x, s.fdelay))
            s.flagit[nb_] = s.flag(2 + nb_, vT[(nb_ >> 1) & 1], g + 'f')

    def tbl_load(s, grp, dst):
        off = grp * 1024
        if off < 4096: return [f"global_load_dwordx4 {R(dst,4)}, v{vT[2]}, s[{sTB}:{sTB+1}] offset:{off}"]
        raise

    def touches(s, lo, n):
        regs = {f"v{r}" for r in range(lo, lo + n)}
        return lambda it: bool((it['ins'].rd | it['ins'].wr) & regs)

    def kernelA(s):
        e = s.e
        s.make_stages(); s.make_backbone()
        e("s_cmp_ge_u32 s2, 256"); e("s_cbranch_scc1 L_endA")
        e("s_load_dwordx16 s[4:19], s[0:1], 0"); e("s_load_dwordx4 s[20:23], s[0:1], 64")
        s.stamp(nowait=True)
        e(f"s_getpc_b64 s[{sTB}:{sTB+1}]"); e("L_pc:")
        e(f"s_lshr_b32 s3, s2, 3"); e("s_lshl_b32 s3, s3, 12"); e("v_lshl_add_u32 v2, v0, 4, s3"); e(f"v_min_u32 v2, L_codeend-L_pc-4, v2")
        e(f"global_load_dword v{vXW}, v2, s[{sTB}:{sTB+1}]")
        e(f"v_lshrrev_b32 v1, 6, v0"); e(f"v_readfirstlane_b32 s{sW}, v1")
        e(f"v_and_b32 v{vLane}, 63, v0")
        odd = sT[0]
        mp = s.mp
        e(f"s_bfe_u32 s{sJ}, s2, {((3-mp)<<16)|mp}"); e(f"s_lshl_b32 s{sJ}, s{sJ}, {1+mp}"); e(f"s_bfe_u32 s{odd}, s2, {((1+mp)<<16)|3}"); e(f"s_add_u32 s{sJ}, s{sJ}, s{odd}")
        e(f"s_and_b32 s{odd}, s{odd}, 1")
        e(f"s_lshr_b32 s{sMT}, s2, {4+mp}")
        if mp:
            e(f"s_and_b32 s{sT[1]}, s2, {(1<<mp)-1}"); e(f"s_lshl_b32 s{sT[1]}, s{sT[1]}, {4-mp}"); e(f"s_add_u32 s{sMT}, s{sMT}, s{sT[1]}")
        e(f"v_lshrrev_b32 v1, 3, v{vLane}"); e("v_mul_u32_u24 v1, 1152, v1"); e(f"v_and_b32 v3, 7, v{vLane}"); e("v_lshl_add_u32 v1, v3, 4, v1")
        e(f"s_lshl_b32 s{sT[1]}, s{sMT}, 2"); e(f"s_add_u32 s{sT[1]}, s{sT[1]}, s{sW}"); e(f"s_mul_i32 s{sT[1]}, s{sT[1]}, {32*1152}")
        e(f"s_lshr_b32 s{sROT}, s2, {mp}"); e(f"s_and_b32 s{sROT}, s{sROT}, {s.rot}"); e(f"s_mul_i32 s{sXO}, s{sROT}, 9216"); e(f"s_add_u32 s{sXO}, s{sXO}, s{sT[1]}")
        e(Wait(alllg=True))
        e(f"s_mov_b32 s{sX}, s4"); e(f"s_mov_b32 s{sX+1}, s5"); e(f"s_mov_b32 s{sX+2}, {2048*1152}"); e(f"s_mov_b32 s{sX+3}, 0x20000")
        def xreg(a, b):
            if b in (5, 6): return XV + ((b - 5) * 4 + a) * 4
            if b in (7, 8): return ACC[0] + ((b - 7) * 4 + a) * 4
            if a == 3: return ACC[0] + 32 + (b - 1) * 4 if b else ACC[1] + 60
            return ACC[1] + (a * 5 + b) * 4
        def xloads(a):
            out = []
            if a: out += [f"s_xor_b32 s{sXO}, s{sROT}, {a}", f"s_mul_i32 s{sXO}, s{sXO}, 9216", f"s_add_u32 s{sXO}, s{sXO}, s{sT[1]}"]
            for b in range(9): out.append(f"buffer_load_dwordx4 {R(xreg(a,b),4)}, v1, {srd(sX)}, s{sXO} offen offset:{b*128}")
            return out
        for a in range(s.xfirst):
            for x in xloads(a): e(x)
        if s.xpf:
            e(f"s_lshl_b32 s{sT[2]}, s{sJ}, 2"); e(f"s_add_u32 s{sT[2]}, s{sT[2]}, s{sW}"); e(f"s_mul_i32 s{sT[2]}, s{sT[2]}, 2304"); e(f"s_mul_i32 s{sT[3]}, s{sMT}, {128*1152}"); e(f"s_add_u32 s{sT[2]}, s{sT[2]}, s{sT[3]}")
            e(f"v_min_u32 v2, 17, v{vLane}"); e("v_lshlrev_b32 v2, 7, v2")
            e(f"buffer_load_dword v{vXW}, v2, {srd(sX)}, s{sT[2]} offen")
        for (b, p, n) in ((sQKV, 6, 576 * 3456), (sWO, 8, 576 * 1152), (sWG, 12, 576 * 9216), (sWU, 14, 576 * 9216), (sWD, 16, 4608 * 1152)):
            e(f"s_sub_u32 s{b}, s{p}, 4096"); e(f"s_subb_u32 s{b+1}, s{p+1}, 0"); e(f"s_mov_b32 s{b+2}, {n+4096}"); e(f"s_mov_b32 s{b+3}, 0x20000")
        e(f"s_mov_b32 s{sWS}, s22"); e(f"s_mov_b32 s{sWS+1}, s23"); e(f"s_mov_b32 s{sWS+2}, {WSREC}"); e(f"s_mov_b32 s{sWS+3}, 0x20000")
        e(f"s_lshl_b32 s{sM0}, s{sW}, 12")
        e(f"s_mul_i32 s{sQ}, s{sJ}, 72"); e(f"s_and_b32 s{sQ}, s{sQ}, -16"); e(f"s_add_u32 s{sQ}, s{sQ}, 4096")
        e(f"s_mul_i32 s{sG}, s{sJ}, 576"); e(f"s_add_u32 s{sG}, s{sG}, 4096")
        e(f"s_mul_i32 s{sD}, s{sJ}, {288*1152}"); e(f"s_add_u32 s{sD}, s{sD}, 4096")
        e(f"s_cmp_eq_u32 s{odd}, 0")
        e(f"s_cselect_b32 s{sT[2]}, 512, 0"); e(f"s_cselect_b32 s{sT[3]}, 0, 64"); e(f"s_cselect_b32 s{sT[4]}, {256*1152}, 0"); e(f"s_cselect_b32 s{sT[5]}, 0, {32*1152}")
        e(f"s_add_u32 s{sGh}, s{sG}, s{sT[2]}"); e(f"s_add_u32 s{sG}, s{sG}, s{sT[3]}"); e(f"s_add_u32 s{sDh}, s{sD}, s{sT[4]}"); e(f"s_add_u32 s{sD}, s{sD}, s{sT[5]}")
        e(f"s_mul_i32 s{sO}, s{sJ}, {36*1152}"); e(f"s_add_u32 s{sO}, s{sO}, 4096")
        e(f"s_lshr_b32 s{sT[2]}, s2, {4+mp}"); e(f"s_lshl_b32 s{sT[2]}, s{sT[2]}, 2"); e(f"s_add_u32 s{sT[2]}, s{sT[2]}, s{sW}"); e(f"s_mul_i32 s{sT[2]}, s{sT[2]}, {(9<<mp)*9216}")
        e(f"s_add_u32 s{sPG}, s{sG}, s{sT[2]}"); e(f"s_add_u32 s{sPGh}, s{sGh}, s{sT[2]}")
        e(f"s_lshr_b32 s{sT[2]}, s2, 3"); e(f"s_lshl_b32 s{sT[2]}, s{sT[2]}, 2"); e(f"s_add_u32 s{sT[2]}, s{sT[2]}, s{sW}")
        e(f"s_lshr_b32 s{sT[3]}, s{sJ}, {1+mp}")
        e(f"s_mul_i32 s{sPD}, s{sT[3]}, {(576<<mp)*1152}"); e(f"s_lshl_b32 s{sT[4]}, s{sT[2]}, {11+mp}"); e(f"s_add_u32 s{sPD}, s{sPD}, s{sT[4]}"); e(f"s_add_u32 s{sPD}, s{sPD}, 4096")
        e(f"s_mul_i32 s{sPO}, s{sT[3]}, {(72<<mp)*1152}"); e(f"s_add_u32 s{sPO}, s{sPO}, s{sT[4]}"); e(f"s_add_u32 s{sPO}, s{sPO}, 4096")
        e(f"s_cmp_lt_u32 s{sT[2]}, 41"); e(f"s_cselect_b32 s{sPO}, s{sPO}, 0x7ff00000")
        e(f"s_mul_i32 s{sT[3]}, s{sT[3]}, {144<<mp}"); e(f"s_and_b32 s{sT[3]}, s{sT[3]}, -128"); e(f"s_mul_i32 s{sT[2]}, s{sT[2]}, {14*1152}")
        e(f"s_add_u32 s{sPT}, s{sT[2]}, s{sT[3]}"); e(f"s_add_u32 s{sPT}, s{sPT}, 4096")
        assert mp <= 1
        e(f"v_lshrrev_b32 v2, {1+mp}, v{vLane}"); e("v_min_u32 v2, 13, v2"); e("v_mul_u32_u24 v2, 1152, v2"); e(f"v_and_b32 v{vPFg}, {(2<<mp)-1}, v{vLane}")
        if mp: e(f"v_min_u32 v{vPFg}, 2, v{vPFg}")
        e(f"v_lshl_add_u32 v5, v{vPFg}, 7, v2")
        e(f"v_min_u32 v{vPFg}, {(9<<mp)-1}, v{vLane}"); e(f"v_mul_u32_u24 v{vPFg}, 9216, v{vPFg}"); e(f"v_lshlrev_b32 v{vPFd}, {5+mp}, v{vLane}")
        e(f"s_mul_i32 s{sT[2]}, s{sW}, {8*9216}"); e(f"s_add_u32 s{sG}, s{sG}, s{sT[2]}"); e(f"s_lshl_b32 s{sT[2]}, s{sT[2]}, 1"); e(f"s_add_u32 s{sGh}, s{sGh}, s{sT[2]}")
        e(f"s_mul_i32 s{sT[2]}, s{sW}, 9216"); e(f"s_add_u32 s{sD}, s{sD}, s{sT[2]}"); e(f"s_add_u32 s{sDh}, s{sDh}, s{sT[2]}"); e(f"s_add_u32 s{sO}, s{sO}, s{sT[2]}")
        e(f"s_mul_i32 s{sP}, s{sJ}, {PSTRIDE_J}"); e(f"s_mul_i32 s{sT[2]}, s{sMT}, {PSTRIDE_M}"); e(f"s_add_u32 s{sP}, s{sP}, s{sT[2]}"); e(f"s_add_u32 s{sP}, s{sP}, {PBASE-HB}")
        e(f"s_mul_i32 s{sREC}, s{sJ}, {16*3072}"); e(f"s_add_u32 s{sREC}, s{sREC}, {RECB}")
        if s.wpf and s.qpfa == 0:
            e(f"buffer_load_dword v{vXW}, v5, {srd(sQKV)}, s{sPT} offen")
            if s.gpf0:
                for x in s.pf_gu(0): e(x)
        t5, t6 = vT2[4], vT2[5]
        e(f"v_lshrrev_b32 v3, 4, v{vLane}"); e(f"s_and_b32 s{sT[2]}, s{sW}, 1"); e(f"s_lshl_b32 s{sT[2]}, s{sT[2]}, 3")
        e(f"v_lshlrev_b32 v{t5}, 1, v3"); e(f"v_or_b32 v{t5}, s{sT[2]}, v{t5}"); e(f"v_and_b32 v{t6}, 15, v{vLane}"); e(f"v_xor_b32 v{t5}, v{t5}, v{t6}"); e(f"v_min_u32 v{t5}, 14, v{t5}")
        e(f"v_mul_u32_u24 v{t6}, 52, v{t5}"); e(f"v_lshrrev_b32 v{t6}, 8, v{t6}"); e(f"v_mul_u32_u24 v{t6}, {1152-80}, v{t6}"); e(f"v_lshl_add_u32 v{t5}, v{t5}, 4, v{t6}")
        e(f"s_lshl_b32 s{sT[2]}, s{sW}, 3"); e(f"v_add_u32 v2, s{sT[2]}, v3"); e("v_mul_u32_u24 v2, 3456, v2"); e(f"v_add_u32 v{vDMA0}, v2, v{t5}")
        vXW2 = PQ + 10
        e(f"s_mul_i32 s{sT[2]}, s{sW}, 20480"); e(f"s_add_u32 s{sT[2]}, s{sT[2]}, {HB}")
        e(f"s_xor_b32 s{sT[3]}, s{sW}, 1"); e(f"s_mul_i32 s{sT[3]}, s{sT[3]}, 20480"); e(f"s_add_u32 s{sT[3]}, s{sT[3]}, {HB}")
        e(f"v_lshlrev_b32 v{t5}, 1, v3"); e(f"v_xor_b32 v{t5}, v{t5}, v{vLane}"); e(f"v_lshlrev_b32 v{t5}, 4, v{t5}"); e(f"v_xor_b32 v{t6}, 16, v{t5}")
        e(f"v_add_u32 v{TB5}, s{sT[2]}, v{t5}"); e(f"v_add_u32 v{TB5+1}, s{sT[2]}, v{t6}"); e(f"v_add_u32 v{TB5+2}, s{sT[3]}, v{t5}"); e(f"v_add_u32 v{TB5+3}, s{sT[3]}, v{t6}")
        e(f"v_bfe_u32 v{t5}, v{vLane}, 2, 1"); e(f"v_and_b32 v{t6}, 3, v{vLane}"); e(f"v_lshl_add_u32 v2, v{t6}, 1, v{t5}"); e(f"v_lshrrev_b32 v3, 3, v{vLane}")
        e(f"v_xor_b32 v2, v2, v3"); e(f"v_lshl_add_u32 v2, v{t6}, 4, v2"); e(f"v_lshlrev_b32 v2, 4, v2"); e(f"v_lshl_add_u32 v2, v{t5}, 10, v2"); e(f"v_add_u32 v{vXW2}, s{sT[2]}, v2")
        e(f"s_and_b32 s{sT[2]}, s{sROT}, 1"); e(f"s_lshl_b32 s{sT[2]}, s{sT[2]}, 7"); e(f"v_add_u32 v{vXW2}, s{sT[2]}, v{vXW2}"); e(f"v_xor_b32 v{vXW2+1}, 128, v{vXW2}")
        e(f"s_add_u32 s{sTB}, s{sTB}, L_tbl-L_pc"); e(f"s_addc_u32 s{sTB+1}, s{sTB+1}, 0")
        vg, vr, vc, va, vb = WIN + 8, WIN + 9, WIN + 10, WIN + 11, WIN + 12
        sp = sT[4]
        e(f"s_and_b32 s{sp}, s{sW}, 1")
        e(f"v_lshrrev_b32 v{vg}, 4, v{vLane}"); e(f"v_bfe_u32 v{vr}, v{vLane}, 2, 2"); e(f"v_and_b32 v{vc}, 3, v{vLane}")
        e(f"v_lshrrev_b32 v2, 3, v{vLane}"); e(f"v_and_b32 v3, 7, v{vLane}")
        e(f"v_and_b32 v{va}, 2, v2"); e(f"v_xor_b32 v{va}, v{va}, v3"); e(f"s_lshl_b32 s{sT[2]}, s{sp}, 2"); e(f"v_xor_b32 v{va}, s{sT[2]}, v{va}")
        e(f"v_mul_u32_u24 v{vb}, 9216, v2"); e(f"v_lshl_add_u32 v{vDMA1}, v{va}, 4, v{vb}")
        e(f"v_lshlrev_b32 v{va}, 1, v{vg}"); e(f"v_xor_b32 v{va}, v{va}, v3"); e(f"v_mul_u32_u24 v{vb}, 1152, v2"); e(f"v_lshl_add_u32 v{vDMA2}, v{va}, 4, v{vb}")
        e(f"v_and_b32 v{va}, 2, v{vg}"); e(f"v_xor_b32 v{va}, v{va}, v{vc}"); e(f"v_lshrrev_b32 v{vb}, 2, v{vLane}"); e(f"v_mul_u32_u24 v{vb}, 9216, v{vb}"); e(f"v_lshl_add_u32 v{vDMAh}, v{va}, 4, v{vb}")
        e(f"v_and_b32 v2, 1, v{vg}")
        e(f"v_lshrrev_b32 v3, 1, v{vg}"); e(f"v_lshlrev_b32 v3, 12, v3"); e(f"v_lshl_add_u32 v3, v2, 9, v3")
        e(f"v_lshrrev_b32 v{va}, 1, v{vr}"); e(f"v_lshl_add_u32 v{va}, v2, 1, v{va}"); e(f"s_lshl_b32 s{sT[2]}, s{sp}, 1"); e(f"v_xor_b32 v{va}, s{sT[2]}, v{va}")
        e(f"v_lshlrev_b32 v{va}, 5, v{va}"); e(f"v_lshl_add_u32 v{va}, v{vr}, 7, v{va}"); e(f"v_lshl_add_u32 v{va}, v{vc}, 3, v{va}")
        e(f"v_lshl_add_u32 v{vTR1[0]}, v{vg}, 12, v{va}"); e(f"v_xor_b32 v{vTR1[1]}, 32, v{vTR1[0]}")
        e(f"v_add_u32 v{vTR2[0]}, v3, v{va}"); e(f"v_xor_b32 v{vTR2[1]}, 32, v{vTR2[0]}")
        e(f"v_xor_b32 v{va}, s{sp}, v2"); e(f"v_lshl_add_u32 v{va}, v{va}, 5, v3"); e(f"v_lshl_add_u32 v{va}, v{vr}, 6, v{va}"); e(f"v_lshl_add_u32 v{vTRh}, v{vc}, 3, v{va}")
        e(f"s_mul_i32 s{sT[2]}, s{sW}, 768"); e(f"v_lshl_add_u32 v{va}, v{vLane}, 4, s{sT[2]}"); e(f"v_mov_b32 v{vb}, 0x7ff00000")
        e(f"v_cmp_gt_u32 vcc, 48, v{vLane}"); e(f"v_cndmask_b32 v{vREC}, v{vb}, v{va}, vcc")
        e(f"s_lshl_b32 s{sT[2]}, s{sp}, 13"); e(f"s_lshl_b32 s{sT[3]}, s{sW}, 11"); e(f"s_add_u32 s{sT[2]}, s{sT[2]}, s{sT[3]}"); e(f"s_add_u32 s{sT[2]}, s{sT[2]}, {HB}")
        e(f"v_lshl_add_u32 v{vHW[0]}, v{vLane}, 4, s{sT[2]}"); e(f"v_xor_b32 v{vHW[1]}, 2048, v{vHW[0]}")
        e(f"v_lshlrev_b32 v3, 12, v{vg}"); e(f"v_lshl_add_u32 v3, v{vr}, 8, v3")
        e(f"v_lshl_add_u32 v2, v2, 2, v{vr}"); e(f"v_lshlrev_b32 v2, 5, v2")
        e(f"v_add_u32 v{va}, s{odd}, v{vc}"); e(f"v_lshlrev_b32 v{va}, 3, v{va}")
        for T, cst in ((0, 0), (1, 32), (3, 80), (4, 112), (5, 160), (6, 192)):
            e(f"v_add_u32 v{vb}, {cst}, v{va}"); e(f"v_xad_u32 v{TB3+T}, v{vb}, v2, v3")
        e(f"s_lshl_b32 s{sT[2]}, s{odd}, 3"); e(f"s_add_u32 s{sT[2]}, s{sT[2]}, 64"); e(f"v_xad_u32 v{TB3+2}, s{sT[2]}, v2, v3")
        e(f"v_and_b32 v{vb}, 1, v{vc}"); e(f"v_mul_u32_u24 v{vb}, 80, v{vb}"); e(f"s_add_u32 s{sT[2]}, s{sT[2]}, 80"); e(f"v_add_u32 v{vb}, s{sT[2]}, v{vb}"); e(f"v_xad_u32 v{TB3+7}, v{vb}, v2, v3")
        e(f"v_lshlrev_b32 v3, 4, v{vLane}")
        c0 = -2.0 * math.sqrt(2.0 / math.pi) * math.log2(math.e); c1 = c0 * 0.044715
        al = -((-c1) ** (1.0 / 3.0)) if s.alpha else 1.0
        s.al = al
        e(f"s_mov_b32 s{sK}, {f32(c0/al if s.alpha else c0/c1)}"); e(f"s_mov_b32 s{sC1}, {f32(al*al if s.alpha else c1)}")
        e(f"s_mov_b32 s{sL2E}, {f32(math.log2(math.e)/al)}"); e(f"s_mov_b32 s{sIA}, {f32(1.0/al)}"); e(f"s_mov_b32 s{sEPS}, {f32(1e-6)}")
        e(f"s_mov_b32 s{sMK}, 0x000f000f"); e(f"s_mov_b32 s{sMK+1}, 0x000f000f"); e(f"s_mov_b32 s{sM1}, 0xff00ff00"); e(f"s_mov_b32 s{sM1+1}, 0xff00ff00")
        e(f"s_mov_b32 s{sMG}, 0xffff"); e(f"s_mov_b32 s{sMG+1}, 0")
        e(f"s_mov_b32 s{sT[2]}, 0x3f803f80")
        e(f"s_lshl_b32 s{sFLG}, s{sMT}, 4"); e(f"s_add_u32 s{sFLG}, s{sFLG}, s{sJ}"); e(f"s_lshl_b32 s{sFLG}, s{sFLG}, 2"); e(f"s_add_u32 s{sFLG}, s{sFLG}, s{sW}")
        e(f"s_lshl_b32 s{sFLG}, s{sFLG}, 7"); e(f"s_add_u32 s{sFLG}, s{sFLG}, {FLAGB}")
        e(f"s_mov_b32 s{sT[4]}, s{sPT}")
        for q in range(4): e(f"v_mov_b32 v{PQ+q}, 0")
        e(f"v_mov_b32 v{PQ+4}, {ZQ}"); e(f"ds_write_b128 v{PQ+4}, {R(PQ,4)}")
        bx = []
        for a in range(s.xfirst, 4):
            bx += [I(x) for x in xloads(a)]
            if a == s.qpfa and s.wpf: bx.append(I(f"buffer_load_dword v{vXW}, v5, {srd(sQKV)}, s{sPT} offen"))
        bw = []
        for si in range(4):
            bw += s.dma_items(si)
            if si == s.gpfs and s.wpf and not s.gpf0: bw += s.pf_gu(0)
        def pop(q):
            while q:
                x = q.pop(0); e(x)
                if x.kind == 'vm': break
        tick = [0]
        def bgstep():
            if bx: pop(bx); return
            tick[0] += 1
            if tick[0] % s.wrate == 0: pop(bw)
        L = WIN + 8
        S1, S2, MU, RS = PQ + 4, PQ + 5, PQ + 6, PQ + 8
        F = s.F
        KEEP = {0: 252, 1: 254, 2: PQ + 2}
        assert min(s.jb0, s.jb1, s.jb2) >= max(5, s.jit0)
        wr_txt = lambda a, b: f"ds_write_b128 v{vXW2+(a&1)}, {R(xreg(a,b),4)} offset:{(b%5)*4096+(a>>1)*2048}"
        rd_txt = lambda lt, t: f"ds_read_b128 {XN(lt, t)}, v{TB5+(lt>>1)*2+(t&1)} offset:{((t>>1)%5)*4096+(lt&1)*2048+(t&1)*1024}"
        s.pstamp()
        for a in range(4):
            while any(x.kind == 'vm' and (x.wr & {f"v{xreg(a,8)}"}) for x in bx): pop(bx)
            e(f"v_mov_b32 v{S1}, 0"); e(f"v_mov_b32 v{S2}, 0")
            for b in range(9):
                for q in range(4):
                    x = xreg(a, b) + q
                    e(f"v_dot2c_f32_bf16 v{S1}, s{sT[2]}, v{x}"); e(f"v_dot2c_f32_bf16 v{S2}, v{x}, v{x}")
                    if q == 0 and (bx or (b & 1)): bgstep()
            for m in ("quad_perm:[1,0,3,2]", "quad_perm:[2,3,0,1]", "row_half_mirror"):
                e(f"v_add_f32_dpp v{S1}, v{S1}, v{S1} {m} row_mask:0xf bank_mask:0xf")
                e(f"v_add_f32_dpp v{S2}, v{S2}, v{S2} {m} row_mask:0xf bank_mask:0xf")
            e(f"v_mul_f32 v{S1}, {f32(1/576)}, v{S1}"); e(f"v_mul_f32 v{S2}, {f32(1/576)}, v{S2}")
            e(f"v_fma_f32 v{S2}, -v{S1}, v{S1}, v{S2}"); e(f"v_max_f32 v{S2}, 0, v{S2}")
            e(f"v_cvt_pk_bf16_f32 v{S1}, v{S1}, v{S2}")
            e(f"v_lshlrev_b32 v{MU}, 16, v{S1}"); e(f"v_and_b32 v{S2}, 0xffff0000, v{S1}")
            e(f"v_add_f32 v{S2}, {f32(1e-5)}, v{S2}"); e(f"v_cvt_pk_bf16_f32 v{S2}, v{S2}, v{S2}"); e(f"v_and_b32 v{S2}, 0xffff0000, v{S2}")
            e(f"v_sqrt_f32 v{S2}, v{S2}"); e(f"v_cvt_pk_bf16_f32 v{S2}, v{S2}, v{S2}"); e(f"v_and_b32 v{S2}, 0xffff0000, v{S2}")
            e(f"v_rcp_f32 v{RS}, v{S2}")
            if s.alpha: e(f"v_mul_f32 v{RS}, {f32(al)}, v{RS}")
            e(f"v_mul_f32 v{MU}, v{MU}, v{RS}"); e(f"v_sub_f32 v{MU}, 0, v{MU}")
            s.pstamp()
            jb = {0: s.jb0, 1: s.jb1, 2: s.jb2, 3: s.jit0}[a]
            if a < 3 and jb < 9:
                e(f"v_mov_b32 v{KEEP[a]}, v{MU}"); e(f"v_mov_b32 v{KEEP[a]+1}, v{RS}")
            for b in range(9):
                jit = (a == 3 and b >= s.jit0)
                if a < 3 and b >= jb: continue
                em = (lambda t_, b=b: F.add(t_, 0, f'ln{b}')) if jit else e
                if a == 3:
                    for a_ in range(3):
                        if b >= {0: s.jb0, 1: s.jb1, 2: s.jb2}[a_]:
                            x = xreg(a_, b); t = L + ((b + a_ + 1) & 1) * 8
                            for q in range(4):
                                F.add(f"v_lshlrev_b32 v{t+2*q}, 16, v{x+q}", 0, f'ln{b}'); F.add(f"v_and_b32 v{t+2*q+1}, 0xffff0000, v{x+q}", 0, f'ln{b}')
                            for q in range(8): F.add(f"v_fma_f32 v{t+q}, v{t+q}, v{KEEP[a_]+1}, v{KEEP[a_]}", 0, f'ln{b}')
                            for q in range(4): F.add(f"v_cvt_pk_bf16_f32 v{x+q}, v{t+2*q}, v{t+2*q+1}", 0, f'ln{b}')
                x = xreg(a, b); t = L + (b & 1) * 8
                for q in range(4):
                    em(f"v_lshlrev_b32 v{t+2*q}, 16, v{x+q}"); em(f"v_and_b32 v{t+2*q+1}, 0xffff0000, v{x+q}")
                for q in range(4):
                    if not jit: em(f"v_pk_fma_f32 {R(t+2*q,2)}, {R(t+2*q,2)}, {R(RS,2)}, {R(MU,2)} op_sel_hi:[1,0,0]")
                    else:
                        for h in range(2): em(f"v_fma_f32 v{t+2*q+h}, v{t+2*q+h}, v{RS}, v{MU}")
                for q in range(4):
                    em(f"v_cvt_pk_bf16_f32 v{x+q}, v{t+2*q}, v{t+2*q+1}")
                if a < 3 and b < 5: e(wr_txt(a, b))
                if a == 2 and b < 5:
                    for t2 in (2 * b, 2 * b + 1): e(rd_txt(0, t2))
                if a == 3:
                    g = f'ln{b}'
                    if b < 5:
                        em(wr_txt(3, b))
                        if jit: F.add(Mark(f'xw{b}'), 0, g)
                        else: e(Mark(f'xw{b}'))
                        for t2 in (2 * b, 2 * b + 1): em(rd_txt(1, t2))
                    else:
                        for a_ in range(4): F.add(wr_txt(a_, b), 0, g, barrier_dep=f'xr{b-5}')
                        F.add(Mark(f'xw{b}'), 0, g)
                        for t2 in (2 * b, 2 * b + 1):
                            for lt in range(2): F.add(rd_txt(lt, t2), 0, g)
                    own = [it for it in F.items if it['group'] == g and it['ins'].kind == 'dsr']
                    for t2 in (2 * b, 2 * b + 1):
                        for lt in (2, 3): F.add(rd_txt(lt, t2), 0, f'lp{b}', barrier_dep=f'xw{b}')
                    F.add(Mark(f'xr{b}'), 0, f'lp{b}', after=own if b < 8 else [it for it in F.items if it['ins'].kind == 'dsr'])
                if not jit and s.wa0 < 0 and (b >= s.xn0 or not bx): bgstep()
                if not jit and s.wa0 >= 0:
                    if bx and bx[0].kind == 'vm' and bx[0].op == 'buffer_load_dword': pop(bx)
                    elif a >= s.wa0 and b % s.wrate == 0: pop(bw)
            s.pstamp()
        while bw and not all(x.tag not in [f"st{k}" for k in range(s.npre)] for x in bw): pop(bw)
        s.dq0 = bw
        s.flag(0, PQ, None, direct=True); e(Mark('init', vm='fl0'))
        e(f"s_lshr_b32 s{sROT}, s{sROT}, 1"); e(f"s_lshl_b32 s{sROT}, s{sROT}, 10")
        s.stamp()
        def hooks(name):
            if name == f"stage{s.atts}":
                n0 = len(s.F.items); s.attn_finish()
                s.F.items[:] = s.F.items[n0:] + s.F.items[:n0]
            if name == "stage5":
                for k in range(2): s.F.add(f"global_load_dwordx4 {R(WIN+4*k,4)}, v3, s[{sTB}:{sTB+1}] offset:{k*1024}", 0, 'tb')
            if name in ("stage0", "stage2", "stage5", "stage9"): s.pstamp()
            if name == f"stage{s.r0st}": s.gates.add('ldok')
            if name == "stage8":
                e(f"s_and_b32 s{sSIG}, s{sMT}, 7"); e(f"s_cmp_eq_u32 s{sW}, 0"); e(f"s_cselect_b32 s{sSIG}, s{sSIG}, 0xff")
            if name.startswith("stage") and 9 <= int(name[5:]) < 17:
                k = int(name[5:]) - 9
                assert 'init' in s.gates
                e(f"s_cmp_eq_u32 s{sSIG}, {k}"); e(f"s_cbranch_scc1 L_sig{k}"); e(f"L_sigb{k}:")
                s.tail += [f"L_sig{k}:", "s_mov_b64 exec, 1", f"global_atomic_inc v{vLane}, v{vHW[0]}, s[20:21] sc1", "s_mov_b64 exec, -1", f"s_branch L_sigb{k}"]
            if name.startswith("stage"): return
            if name == "ph0_done":
                s.stamp()
                s.ph0_epilogue()
                F = s.F
                F.add(f"v_lshlrev_b32 v{WIN+23}, 4, v{vLane}", 0, 'tb')
                for k in range(2):
                    F.add(f"global_load_dwordx4 {R(TB3+4*k,4)}, v{WIN+23}, s[{sTB}:{sTB+1}] offset:{2048+k*1024}", 0, 'tb')
                F.add(f"s_lshl_b32 s{sT[5]}, s{sW}, 10", 0, 'tb'); F.add(f"s_add_u32 s{sT[5]}, s{sT[5]}, 4096", 0, 'tb')
                F.add(f"v_add_u32 v{WIN+23}, s{sT[5]}, v{WIN+23}", 0, 'tb')
                F.add(f"global_load_dwordx4 {R(TB3+8,4)}, v{WIN+23}, s[{sTB}:{sTB+1}]", 0, 'tb')
            elif name.startswith("blk"):
                b = int(name[3])
                s.stamp(name)
                s.gelu(b)
                if b == 3:
                    e(f"s_and_b32 s{sH0}, s{sW}, 1"); e(f"s_lshl_b32 s{sH1}, s{sH0}, 13"); e(f"s_lshl_b32 s{sH0}, s{sH0}, 3")
                    for k in range(2):
                        e(f"v_subrev_u32 v{vHR[k]}, s{sH1}, v{vHW[k]}"); e(f"v_add_u32 v{vHR[2+k]}, 65536, v{vHR[k]}"); e(f"v_add_u32 v{vHH[k]}, s{sH0}, v{vHR[2+k]}")
            elif name.startswith("hs") or name == "half_done":
                k = int(name[2]) if name.startswith("hs") else 4
                if k == 4:
                    s.stamp()
                    e(f"v_bfe_u32 v{vK16}, v{vLane}, 2, 2"); e(f"v_mul_u32_u24 v{vK16}, 1152, v{vK16}"); e(f"v_and_b32 v{vTRh}, 3, v{vLane}"); e(f"v_lshl_add_u32 v{vK16}, v{vTRh}, 3, v{vK16}")
                    e(f"s_and_b32 s{sH0}, s{sW}, 1"); e(f"s_lshl_b32 s{sH0}, s{sH0}, 6"); e(f"s_add_u32 s{sH0}, s{sH0}, {W10}"); e(f"v_add_u32 v{vK16}, s{sH0}, v{vK16}")
                    s.gelu(4)
                n0 = len(s.F.items)
                for ks in {0: [0, 1, 2, 3], 1: [4, 5, 6, 7], 2: [9, 10], 3: [], 4: [8]}[k]:
                    gate = f"h{ks//2}" if ks <= 8 else 'o'
                    for lt in range(4):
                        b = vHR[(lt >> 1) + (2 if ks >= 8 else 0)]
                        o = (ks % 8) * 8192 + (lt & 1) * 1024
                        s.F.add(f"ds_read_b128 {XN(lt,ks)}, v{b} offset:{o}" if ks < 10 else f"ds_read_b64 {XN(lt,ks,2)}, v{b} offset:{o}", 0, f'hr{ks}', barrier_dep=gate)
                if k == 4: s.F.add(Mark('hfree'), 0, 'hf', after=[it for it in s.F.items if it['group'].startswith('hr')])
                s.F.items[:] = s.F.items[n0:] + s.F.items[:n0]
            elif name.startswith("nb"):
                n = int(name[2])
                if n == s.NO - 1: s.stamp()
                if s.pst == 99 and n >= 1: s.stamp('p', True, True)
                n0 = len(s.F.items); s.p2_epilogue(n)
                ne = sum(1 for it in s.F.items[:n0] if it['group'].startswith('ep'))
                old = s.F.items[:n0]
                s.F.items[:] = [it for it in old if it['group'].startswith('ep')] + s.F.items[n0:] + [it for it in old if not it['group'].startswith('ep')]
                if n == 2:
                    F = s.F; g = 'rs'
                    for x in [f"s_mov_b32 s{sOUT}, s18", f"s_mov_b32 s{sOUT+1}, s19", f"s_mov_b32 s{sOUT+2}, {2048*1152}", f"s_mov_b32 s{sOUT+3}, 0x20000",
                              f"s_mul_i32 s{sRB}, s{sMT}, {PSTRIDE_M}", f"s_lshl_b32 s{sXB}, s{sJ}, 10", f"s_add_u32 s{sRB}, s{sRB}, s{sXB}", f"s_add_u32 s{sRB}, s{sRB}, {PBASE}",
                              f"s_and_b32 s{sXB}, s{sJ}, 7", f"s_lshl_b32 s{sFB}, s{sMT}, 3", f"s_add_u32 s{sXB}, s{sXB}, s{sFB}", f"s_mul_i32 s{sXB}, s{sXB}, {16*1152}",
                              f"s_lshr_b32 s{sFB}, s{sJ}, 3", f"s_lshl_b32 s57, s{sFB}, 6", f"s_add_u32 s{sXB}, s{sXB}, s57",
                              f"s_bfe_u32 s57, s{sJ}, 0x10002", f"s_lshl_b32 s57, s57, 1", f"s_add_u32 s{sFB}, s{sFB}, s57",
                              f"s_lshl_b32 s57, s{sMT}, 6", f"s_add_u32 s{sFB}, s{sFB}, s57", f"s_lshl_b32 s{sFB}, s{sFB}, 7", f"s_add_u32 s{sFB}, s{sFB}, {FLAGB}",
                              f"v_and_b32 v{vFP}, 15, v{vLane}", f"v_lshlrev_b32 v{vFP}, 9, v{vFP}"] + s.rr_addr(2) + s.rr_addr(1): F.add(x, 0, g)
                if n in (2, 3, 6):
                    b0 = {2: 0, 3: 2, 6: 4}[n]
                    s.rr_poll(b0)
                    if b0 < 2 * s.nov: s.rr_body(b0)
            if not s.overlap: s.flush()
        s.run_backbone(hooks)
        s.flush(lambda it: it['group'].startswith('ep'))
        p99 = lambda: s.stamp('p', True, True) if s.pst == 99 else None
        s.stamp()
        S0 = s.S
        s.S = []; s.flush(lambda it: it['group'] in ('rr0', 'rr2', 'rr4')); LQ = s.S
        s.S = []; s.flush(); FQ = s.S
        s.S = S0
        toI = lambda l: [I(x) if isinstance(x, str) else x for x in l]
        for b0 in range(2 * s.nov, 10, 2):
            r = s.rr(b0, True)
            if b0 >= 6:
                ld, chk = s.poll(r['name'], r['load'], r['vf'], r['need'], [], None, direct=True, sleep=2)
                k = len(LQ); n = 0
                while k > 0 and n < s.pahead:
                    k -= 1; n += (LQ[k].kind == 'vm')
                LQ.insert(k, ld); ld.tag = 'poll'
                LQ += chk.ins
            LQ += toI(r['pre'] + r['loads'])
            FQ += toI(r['fin'])
        e(Wait(vm=['p6', 'p7'])); s.flag(9, vT[0], None, direct=True)
        issued = set(); order = []
        allld = set()
        for x in LQ:
            if x.kind == 'vm': allld |= x.wr
        nld = 0; flagged = False
        def fin_ready(x, win):
            t = (x.rd | x.wr) & allld
            if not t: return True
            if not t <= issued: return False
            last = max(k for k, w in enumerate(order) if w & t)
            return last < len(order) - win
        while LQ:
            x = LQ[0]
            if not flagged and (nld >= s.kpre or x.tag == 'poll'):
                n = 0
                while FQ and n < s.drainwork and not ((FQ[0].rd | FQ[0].wr) & allld) and FQ[0].kind != 'vm':
                    s.S.append(FQ.pop(0)); n += 1
                e(Wait(vm='p8')); s.flag(10, vT[1], None, direct=True); p99(); flagged = True
            while any((y.rd | y.wr) & (x.wr - SCC) and not ((y.rd | y.wr) & (allld - issued) & x.wr) for y in FQ if fin_old(y, issued, allld)):
                s.S.append(FQ.pop(0))
            LQ.pop(0); s.S.append(x)
            if x.kind == 'label' and x.text.startswith('L_bk_r') and x.text[6] in '68': p99()
            if x.kind == 'vm':
                nld += 1; issued |= x.wr; order.append(set(x.wr))
                if flagged:
                    while FQ and fin_ready(FQ[0], s.win): s.S.append(FQ.pop(0))
        s.stamp()
        s.S += FQ
        if s.stamps: e(Wait(allvm=True))
        p99(); e(Wait(alllg=True))
        s.stamp()
        if s.stamps:
            e(f"s_add_u32 s22, s22, {STAMP}"); e("s_addc_u32 s23, s23, 0"); e("s_lshl_b32 s3, s2, 7"); e(f"s_lshl_b32 s16, s{sW}, 15"); e("s_add_u32 s3, s3, s16"); e("v_mov_b32 v1, s3")
            for k in range(s.nst):
                e(f"v_mov_b32 v2, s{STP[k]}"); e(f"v_mov_b32 v3, s{STP[k]+1}"); e(f"global_store_dwordx2 v1, v[2:3], s[22:23] offset:{8*k}"); e("s_nop 1")
            e("s_waitcnt vmcnt(0)")
        e("L_endA:"); e("s_endpgm")

    def dumpH(s):
        e = s.e
        e(f"v_lshlrev_b32 v5, 4, v{vLane}"); e(f"s_mul_i32 s{sT[4]}, s{sW}, 22528"); e(f"v_add_u32 v5, s{sT[4]}, v5"); e(f"v_add_u32 v6, {HB}, v5")
        e(f"s_mul_i32 s{sT[4]}, s2, 90112"); e(f"s_add_u32 s{sT[4]}, s{sT[4]}, {64<<20}")
        e(f"s_mov_b32 s{sWS+2}, {128<<20}")
        for k in range(22):
            e(f"ds_read_b128 {R(ACC[0],4)}, v6 offset:{k*1024}")
            e(f"buffer_store_dwordx4 {R(ACC[0],4)}, v5, {srd(sWS)}, s{sT[4]} offen"); e(f"s_add_u32 s{sT[4]}, s{sT[4]}, 1024"); e("s_nop 4")
        e(f"s_mov_b32 s{sWS+2}, {WSREC}")

def kernelB(al, stamps):
    S = []; e = lambda x: S.append(I(x) if isinstance(x, str) else x)
    NWV = 9
    e("s_cmp_ge_u32 s2, 256"); e("s_cbranch_scc1 L_endB")
    if stamps: e("s_memrealtime s[44:45]")
    e("s_load_dwordx2 s[4:5], s[0:1], 0"); e("s_load_dwordx2 s[6:7], s[0:1], 56"); e("s_load_dwordx2 s[8:9], s[0:1], 72")
    e("v_lshrrev_b32 v1, 6, v0"); e("v_readfirstlane_b32 s3, v1"); e("v_and_b32 v0, 63, v0")
    e(f"s_mul_i32 s10, s2, {NWV}"); e("s_add_u32 s10, s10, s3")
    e("s_lshr_b32 s11, s2, 4")
    e("s_mul_i32 s12, s11, 144"); e("s_sub_u32 s12, s10, s12")
    e("s_and_b32 s13, s12, 7"); e("s_lshr_b32 s14, s12, 3")
    e("s_lshl_b32 s15, s10, 10"); e(f"s_add_u32 s15, s15, {PBASE}")
    e("v_lshlrev_b32 v2, 4, v0")
    e("s_lshl_b32 s16, s11, 3"); e("s_add_u32 s16, s16, s13"); e(f"s_mul_i32 s16, s16, {16*1152}"); e("s_lshl_b32 s17, s14, 6"); e("s_add_u32 s16, s16, s17")
    e("v_and_b32 v3, 15, v0"); e("v_mul_u32_u24 v3, 1152, v3"); e("v_lshrrev_b32 v4, 4, v0")
    e("v_lshl_add_u32 v5, v4, 3, v3")
    e("v_and_b32 v6, 1, v4"); e("v_lshrrev_b32 v4, 1, v4"); e("v_lshl_add_u32 v3, v6, 5, v3"); e("v_lshl_add_u32 v3, v4, 4, v3")
    e(Wait(alllg=True))
    e("s_mov_b32 s20, s8"); e("s_mov_b32 s21, s9"); e(f"s_mov_b32 s22, {WSREC}"); e("s_mov_b32 s23, 0x20000")
    e("s_mov_b32 s24, s4"); e("s_mov_b32 s25, s5"); e(f"s_mov_b32 s26, {2048*1152}"); e("s_mov_b32 s27, 0x20000")
    e("s_mov_b32 s28, s6"); e("s_mov_b32 s29, s7"); e(f"s_mov_b32 s30, {2048*1152}"); e("s_mov_b32 s31, 0x20000")
    for i in range(16):
        e(f"buffer_load_dwordx4 {R(24+4*i,4)}, v2, s[20:23], s15 offen")
        if i < 15: e(f"s_add_u32 s15, s15, {PSTRIDE_J}")
    e("buffer_load_dwordx2 v[20:21], v5, s[24:27], s16 offen"); e("buffer_load_dwordx2 v[22:23], v5, s[24:27], s16 offen offset:32")
    for i in range(16):
        for q in range(4):
            x = 24 + 4 * i + q
            if i == 0:
                e(f"v_lshlrev_b32 v{8+2*q}, 16, v{x}"); e(f"v_and_b32 v{9+2*q}, 0xffff0000, v{x}")
            else:
                t = 16 + 2 * (q & 1)
                e(f"v_lshlrev_b32 v{t}, 16, v{x}"); e(f"v_and_b32 v{t+1}, 0xffff0000, v{x}")
                e(f"v_pk_add_f32 {R(8+2*q,2)}, {R(8+2*q,2)}, {R(t,2)}")
    e(f"s_mov_b32 s18, {f32(1.0/(al*al))}")
    for q in range(4):
        e(f"v_lshlrev_b32 v16, 16, v{20+q}"); e(f"v_and_b32 v17, 0xffff0000, v{20+q}")
        e(f"v_fma_f32 v{8+2*q}, v{8+2*q}, s18, v16"); e(f"v_fma_f32 v{9+2*q}, v{9+2*q}, s18, v17")
        e(f"v_cvt_pk_bf16_f32 v{24+q}, v{8+2*q}, v{9+2*q}")
    e("v_permlane16_swap_b32 v24, v26"); e("v_permlane16_swap_b32 v25, v27")
    e("buffer_store_dwordx4 v[24:27], v3, s[28:31], s16 offen")
    if stamps:
        e("s_waitcnt vmcnt(0)"); e("s_memrealtime s[46:47]"); e("s_waitcnt lgkmcnt(0)")
        e("s_cmp_lg_u32 s3, 0"); e("s_cbranch_scc1 L_endB")
        e(f"s_add_u32 s8, s8, {STAMP+0x100000}"); e("s_addc_u32 s9, s9, 0"); e("s_lshl_b32 s17, s2, 4"); e("v_mov_b32 v1, s17")
        e("v_mov_b32 v4, s44"); e("v_mov_b32 v5, s45"); e("v_mov_b32 v6, s46"); e("v_mov_b32 v7, s47")
        e("global_store_dwordx4 v1, v[4:7], s[8:9]"); e("s_waitcnt vmcnt(0)")
    e("L_endB:"); e("s_endpgm")
    return S

def kd(name, nv, acc, ns):
    return f""".p2align 6
.amdhsa_kernel {name}
  .amdhsa_next_free_vgpr {nv}
  .amdhsa_next_free_sgpr {ns}
  .amdhsa_accum_offset {acc}
  .amdhsa_group_segment_fixed_size 0
  .amdhsa_kernarg_size 80
  .amdhsa_user_sgpr_count 2
  .amdhsa_user_sgpr_kernarg_segment_ptr 1
  .amdhsa_system_sgpr_workgroup_id_x 1
.end_amdhsa_kernel
"""

def generate(**kw):
    g = Gen(**kw); g.kernelA()
    ab = kw.get('abl', 0)
    if ab:
        S2 = []; seen_bb = False
        for x in g.S:
            t = getattr(x, 'text', '')
            if (ab & 1) and t.startswith('buffer_store') and x.tag != 'rec': continue
            if (ab & 2) and ' lds' in t and x.tag and int(x.tag[2:]) >= 13: continue
            if (ab & 4) and t == 's_barrier' and seen_bb: continue
            if (ab & 8) and t.startswith('buffer_store') and x.tag != 'rec': x = I(t.replace(' sc1', ''), x.tag)
            if (ab & 16) and '16x16x16' in t: continue
            if (ab & 32) and t.startswith('ds_read_b64_tr') and seen_bb: continue
            if (ab & 64) and x.kind in ('valu', 'trans', 'dsw') and seen_bb and 'readfirstlane' not in t and not t.startswith('v_mov') and not t.startswith('v_add_u32') and not t.startswith('v_min_u32') and not t.startswith('v_sub') and not t.startswith('v_lshl'): continue
            if 'global_atomic' in t: seen_bb = True
            S2.append(x)
        g.S = S2
    A, auto, nn = postpass(g.S, verbose=bool(kw.get('verbose')))
    nm = sum(1 for x in A if x.kind == 'mfma')
    print(f"kernelA: {len(A)} instrs, {nm} mfma, auto waits {auto}, nops {nn}, extra barriers {g.nextra}, late reads {g.late}, overflow {g.novf}, flushed {g.flushlog} nst {g.nst}", file=sys.stderr)
    o = [HDR.rstrip()]
    o.append("; @launch grid=(256,1,1) block=(256,1,1) lds=163840")
    o.append('.amdgcn_target "amdgcn-amd-amdhsa--gfx950"'); o.append(".text")
    o += [f".globl {KN}_kernel", ".p2align 8", f".type {KN}_kernel,@function", f"{KN}_kernel:"]
    o += [("    " + x.text if x.kind != 'label' else x.text) for x in A if x.text]
    o += [("    " + x if not x.endswith(":") else x) for x in g.tail]
    o += [".p2align 7", ".type L_tbl,@object", "L_tbl:"]
    for G in build_table():
        for l in G: o.append(".long " + ", ".join("0x%x" % v for v in l))
    o.append(f".size L_tbl, {NGRP*1024}")
    o.append("L_codeend:")
    o.append('.section .rodata,"a"')
    o.append(kd(KN + "_kernel", 512, 256, 102))
    return "\n".join(o) + "\n"

if __name__ == "__main__":
    import argparse
    ap = argparse.ArgumentParser()
    ap.add_argument("-o", default="k.s")
    ap.add_argument("--alpha", action="store_true"); ap.add_argument("--chain", type=int, default=1)
    ap.add_argument("--stamps", action="store_true"); ap.add_argument("--dump"); ap.add_argument("--nooverlap", action="store_true")
    ap.add_argument("-D", type=int, default=4)
    ap.add_argument("-k", action="append", default=[])
    a = ap.parse_args()
    open(a.o, "w").write(generate(alpha=a.alpha, chain=a.chain, stamps=a.stamps, dump=a.dump, overlap=not a.nooverlap, D=a.D, **{x.split('=')[0]: int(x.split('=')[1]) for x in a.k}))
```

```python
import sys, math, struct
from asmlib import *

KN = "parallel_sum__linear_attn_block__geglu_ffn__prompt"
HDR = open("cdna_kernels/" + KN + ".s.ref").read().split("; Override launch")[0]

def f32(x): return "0x%08x" % struct.unpack("<I", struct.pack("<f", x))[0]

RING = 0; HB = 65536; OB = HB + 73728; MISC = OB + 16384
KVS = OB
KVT = OB + 12288
SUMB = MISC
ZQ = MISC + 3072
W10 = MISC + 3104
PBASE = 1 << 20
PSTRIDE_J = 2359296; PSTRIDE_M = 147456
RECB = 48 << 20
FLAGB = 56 << 20
WSREC = 64 << 20
STAMP = 128 << 20

vLane = 0
vT = [1, 2, 3, 4]
vDMA0 = 4
TB0 = 8;  vDMA1, vDMAh, vDMA2, vXW = 8, 9, 10, 11
TB1 = 12; vTR1 = (12, 13); vTRh = 14; vREC = 15
TB2 = 16; vTR2 = (16, 17); vHW = (18, 19)
TB3 = 20
TB5 = 28
PQ = 32
XV = 44
ACC = (76, 140)
FR = 204; NF = 6
WIN = 228
vT2 = [5, 6, 7, 252, 253, 254, 255]
sX, sQKV, sWO, sWG, sWU, sWD, sWS = 24, 28, 32, 36, 40, 44, 48
sW, sJ, sMT, sM0, sQ, sG, sGh, sD, sDh, sO, sP, sREC = 52, 53, 54, 55, 56, 57, 58, 59, 60, 61, 62, 63
sK, sC1, sL2E, sIA, sEPS, sA2 = 64, 69, 66, 67, 68, 69
sSO = [70, 71, 72, 73]
sMK, sM1, sMG = 74, 76, 78
sPG, sPGh, sPD, sPO, sPT = 0, 1, 3, 10, 11
sSPIN, sFLG, sSIG, sOUT = 16, 17, 16, 28
sRB, sXB, sFB = 64, 66, 68
vFP = 14
sH0, sH1 = 3, 56
sROT, sXO = 65, 87
vPFg, vPFd = 6, 7
vHR = (12, 13, 6, 7); vHH = (8, 11); vK16 = 9
sTB = 80
sT = [82, 83, 84, 85, 86, 87]
STP = [88, 90, 92, 94, 96, 98, 100, 4, 6, 8, 12, 14]

def R(b, n, k='v'): return f"{k}[{b}:{b+n-1}]" if n > 1 else f"{k}{b}"
def srd(b): return f"s[{b}:{b+3}]"
def XN(lt, t, n=4):
    return R((lt * 16 + t) * 4, n, 'a') if t < 16 else R(XV + (lt * 2 + t - 16) * 4, n)

def build_table():
    G = [[None] * 64 for _ in range(8)]
    for l in range(64):
        g = l >> 4; i = l & 15
        def kvaddr(kx, vy):
            if vy == 0: row = i
            elif vy == 1: row = 16 + i
            else: row = 28 + i if 4 <= i <= 9 else None
            quad = g if kx == 0 else (4 + g if kx == 1 else (8 if g == 0 else None))
            if row is None or quad is None: return KVS + 3072 + l * 16
            head = (1 if row >= 18 else 0) if row < 36 else row - 36
            qq = quad - 4 * head
            if not 0 <= qq <= 4: return KVS + 3072 + l * 16
            return KVS + (row * 5 + qq) * 16
        ka = [kvaddr(kx, vy) for kx, vy in KVPROD]
        G[0][l] = ka[:4]; G[1][l] = ka[4:]
        def ga(row, quad):
            if row is None: return ZQ
            head = (1 if row >= 18 else 0) if row < 36 else row - 36
            qq = quad - 4 * head
            if not 0 <= qq <= 4: return ZQ
            return SUMB + (row * 5 + qq) * 16
        rowD = 36 + (i & 1); row0 = i; row1 = 16 + i; row2 = 32 + i if i < 4 else None
        f1 = lambda row: ga(row, 8) if g == 0 else ZQ
        G[2][l] = [ga(rowD, g), ga(rowD, 4 + g), f1(rowD), ga(row0, g)]
        G[3][l] = [ga(row0, 4 + g), ga(row1, g), ga(row1, 4 + g), f1(row1)]
        for w in range(4):
            n = 48 * w + l
            row_n, qq_n = divmod(n, 5)
            head_n = (1 if row_n >= 18 else 0) if row_n < 36 else row_n - 36
            mlo = 0 if (head_n == 1 and qq_n == 0) else 0xffffffff
            mhi = 0 if (head_n == 0 and qq_n == 4) else 0xffffffff
            G[4 + w][l] = [ga(row2, 4 + g), f1(row2), mlo, mhi]
    return G
KVPROD = [(0, 0), (0, 1), (0, 2), (1, 0), (1, 1), (1, 2), (2, 1), (2, 2)]
NGRP = 8

class Mark:
    kind = 'label'; op = 'label'; text = ''; tag = None; isdot = False; isdpp = False; isperm = False; wide = False
    def __init__(self, gate, vm=None): self.gate = gate; self.vm = vm; self.rd = set(); self.wr = set()

class Raw:
    kind = 'sctl'; op = 'raw'; tag = None; isdot = False; isdpp = False; isperm = False; wide = False
    def __init__(self, ins, rd=(), wr=()):
        self.ins = [I(x) if isinstance(x, str) else x for x in ins]; self.text = 'RAW'
        self.rd = set(rd); self.wr = set(wr)
        for x in self.ins: self.rd |= x.rd; self.wr |= x.wr

def fin_old(y, issued, allld):
    return False

class Gen:
    def __init__(s, alpha=False, chain=1, stamps=False, D=4, dump=None, overlap=True, **kw):
        s.alpha = alpha; s.chain = chain; s.stamps = stamps; s.D = D; s.dump = dump; s.overlap = overlap
        s.S = []
        s.F = Filler()
        s.gates = set(); s.pending_marks = []
        s.vmorder = []
        s.nst = 0; s.stnames = []
        s.tail = []
        s.nextra = 0; s.flushlog = []; s.late = 0; s.bdelay = 5; s.ddslack = 4; s.xfirst = 1; s.bgrate = 1; s.jit0 = 3; s.wpf = 1; s.npre = 1; s.cyc = 0; s.ofl = 0; s.aslist = 0; s.dbgwg = -1; s.dswgap = 4; s.jb0 = 9; s.jb1 = 9; s.jb2 = 5; s.order = 1; s.qpfs = 1; s.lnlead = 52; s.gpfs = 9; s.wa0 = 0; s.xpf = 0; s.gpf0 = 0; s.mp = 0; s.pahead = 14; s.win = 16; s.kpre = 8; s.stprio = 1; s.pollit = {}; s.lastld = None; s.ldsp = 30; s.plat = 250; s.nov = 2; s.vmlat = 500; s.norr = 0; s.NX = 0; s.fdelay = 260; s.r0st = 56; s.rb4 = ACC[0] + 32; s.pdelay = 300; s.drainwork = 180; s.flagit = {}; s.oflag = ''; s.r0at = 4; s.r4at = 6; s.stcl = 0; s.w64 = 1; s.qpfa = 9; s.wrate = 2; s.xn0 = 0; s.pst = 0; s.rot = 3; s.popN = 12; s.popM = 1; s.dlm = 44; s.defth = 3; s.novf = 0; s.NO = 2; s.stsp = 14; s.dmagap = 7; s.fvmgap = 1; s.fvmreset = 0; s.atts = 30; s.pfoff = -2; s.pfd = 20; s.touch = 0
        for k, v in kw.items(): setattr(s, k, v)
    def e(s, x, tag=None):
        ins = I(x, tag) if isinstance(x, str) else x
        if isinstance(ins, Raw):
            for y in ins.ins: s.e(y)
            return
        if isinstance(ins, Mark):
            s.pending_marks.append(ins); return
        if ins.kind == 'vm': s.vmorder.append(ins.tag)
        s.S.append(ins)
    def pstamp(s):
        if s.stamps and s.pst == 1: s.stamp('p', True, True)
    def stamp(s, name='', nowait=False, pro=False):
        if s.stamps and (bool(s.pst) == pro or (s.nst == 0 and s.pst < 2)) and s.nst < 12:
            r = STP[s.nst]; s.e(f"{'s_memtime' if s.cyc else 's_memrealtime'} s[{r}:{r+1}]"); s.nst += 1; s.stnames.append(name)
            if not nowait: s.e(Wait(alllg=True))
    def barrier(s, vmtag=None):
        s.e(Wait(vm=vmtag, alllg=True)); s.e("s_barrier")
        cov = -1
        if vmtag is not None:
            for k, t in enumerate(s.vmorder):
                if t == vmtag: cov = k
        keep = []
        for m in s.pending_marks:
            ok = True
            if m.vm is not None:
                last = max(k for k, t in enumerate(s.vmorder) if t == m.vm)
                ok = last <= cov
            if ok: s.gates.add(m.gate)
            else: keep.append(m)
        s.pending_marks = keep

    def make_stages(s):
        st = []
        s.phases = ['q', 0, 1, 2, 3] if s.order == 0 else [0, 'q', 1, 2, 3]
        s.pst0 = {ph: 9 * n for n, ph in enumerate(s.phases)}
        s.pst0[4] = 45
        for ph in s.phases:
            for k in range(9):
                if ph == 'q': st.append([(sQKV, vDMA0, sQ, (64 * k + 32 * (q >> 1) + 4 * (q & 1)) * 3456) for q in range(4)])
                else: st.append([((sWG, sWU)[q & 1], vDMA1, sG, ph * 128 + (64 * k + 32 * (q >> 1)) * 9216) for q in range(4)])
        for k in range(5):
            st.append([((sWG, sWU)[q & 1], vDMAh, sGh, (128 * k + 64 * (q >> 1)) * 9216) for q in range(4 if k < 4 else 2)])
        NO = s.NO
        seg = []
        early = [0, 1, 2, 3, 4, 5]
        for nb in range(NO): seg.append((nb, early))
        for nb in range(NO): seg.append((nb, [6, 7]))
        for nb in range(NO): seg.append((nb, [9, 8, 10]))
        for nb in range(NO, 9): seg.append((nb, [0, 1, 2, 3, 4, 5, 6, 7, 9, 8, 10]))
        s.seg = seg
        units = []
        for nb, kss in seg:
            for ks in kss:
                if ks < 8: units.append((sWD, vDMA2, sD, nb * 128 + 32 * ks * 1152))
                elif ks == 8: units.append((sWD, vDMA2, sDh, nb * 128))
                elif ks == 9: units.append((sWO, vDMA2, sO, nb * 128))
        for k in range(0, len(units), 4): st.append(units[k:k + 4])
        s.stages = st
        s.P1 = 9; s.PH = 45; s.P2 = 50
    def slot(s, si):
        x = si - (len(s.stages) - s.NX)
        return RING + (si % 4) * 16384 if x < 0 else HB + x * 16384
    def dma_items(s, si):
        out = [I(f"s_add_u32 m0, s{sM0}, {s.slot(si)}")]
        for q, (sr, vo, sb, c) in enumerate(s.stages[si]):
            so = sSO[q]
            cc = c - q * 1024
            out.append(I(f"s_add_u32 s{so}, s{sb}, {cc}" if cc >= 0 else f"s_sub_u32 s{so}, s{sb}, {-cc}"))
            out.append(I(f"buffer_load_dwordx4 v{vo}, {srd(sr)}, s{so} offen offset:{q*1024} lds", tag=f"st{si}"))
        return out

    def pf_gu(s, b):
        base = f"s_add_u32 s{sPT}, s{sPG}, {b*128}" if b < 4 else f"s_mov_b32 s{sPT}, s{sPGh}"
        return [I(base), I(f"buffer_load_dword v{vXW}, v{vPFg}, {srd(sWG)}, s{sPT} offen"), I(f"buffer_load_dword v{vXW}, v{vPFg}, {srd(sWU)}, s{sPT} offen")]
    def pf_items(s, si):
        out = []
        if si == s.pfd + 15:
            out += [I(f"s_lshl_b32 s{sPT}, s{sW}, 10"), I(f"s_add_u32 m0, s{sPT}, {W10}"), I(f"s_mul_i32 s{sPT}, s{sW}, {1024-9216}"), I(f"s_add_u32 s{sPT}, s{sPT}, s{sO}"),
                    I(f"s_add_u32 s{sPT}, s{sPT}, {32*1152}"), I(f"v_lshlrev_b32 v{vPFd}, 4, v{vLane}"),
                    I(f"buffer_load_dwordx4 v{vPFd}, {srd(sWO)}, s{sPT} offen lds"),
                    I(f"s_mov_b32 m0, {W10+3584}"), I(f"s_mul_i32 s{sPT}, s{sW}, {-9216}"), I(f"s_add_u32 s{sPT}, s{sPT}, s{sO}"), I(f"s_add_u32 s{sPT}, s{sPT}, {32*1152+3584}"),
                    I(f"buffer_load_dwordx4 v{vPFd}, {srd(sWO)}, s{sPT} offen lds")]
        if not s.wpf: return out
        for b in range(1, 5):
            if si == s.pst0[b] - 9 + s.pfoff: out += s.pf_gu(b)
        if s.order == 1 and si == s.qpfs: out += [I(f"buffer_load_dword v{vXW}, v5, {srd(sQKV)}, s{sT[4]} offen")]
        for k in range(3):
            if si == s.pfd + 4 * k:
                out += [I(f"s_add_u32 s{sPT}, s{sPD}, {k*128*(2048<<s.mp)}"), I(f"buffer_load_dword v{vXW}, v{vPFd}, {srd(sWD)}, s{sPT} offen")]
        if si == s.pfd + 12: out += [I(f"buffer_load_dword v{vXW}, v{vPFd}, {srd(sWO)}, s{sPO} offen")]
        return out

    def make_backbone(s):
        frags = []; groups = []
        pool0 = [FR + 4 * k for k in range(NF)] + ([124 + 4 * k for k in range(4)] if s.order == 0 else [WIN + 8 + 4 * k for k in range(4)])
        pool1 = [FR + 4 * k for k in range(NF)]
        pool2 = pool1
        cnt = {}
        s.freg = []; s.fprev = []; last = {}
        def addfrag(si, base, offs, static=False):
            pool = pool0 if s.isq(si) else pool1
            k = cnt.get(id(pool), 0); cnt[id(pool)] = k + 1
            reg = min(pool, key=lambda r: last.get(r, -1))
            s.freg.append(reg); s.fprev.append(last.get(reg, -1)); last[reg] = len(frags)
            frags.append((si, base, [(0 if static else s.slot(si) % 65536) + o for o in offs])); return len(frags) - 1
        M = "v_mfma_f32_16x16x32_bf16"
        def emit_chain(items, hook=None):
            fids = [it[0] for it in items]
            ms = []
            for a in range(len(items[0][1])):
                for k, it in enumerate(items):
                    ms.append((k,) + it[1][a])
            groups.append((fids, ms, hook))
        ch = s.chain
        for ph in s.phases:
            for k in range(9):
                si = s.pst0[ph] + k
                nq = 8 if ph == 'q' else 4
                order = [(kk, q) for kk in range(2) for q in range(nq)] if ch == 1 else [(None, q) for q in range(nq)]
                for kk, q in order:
                    its = []
                    for k2 in ([kk] if ch == 1 else [0, 1]):
                        t = 2 * k + k2
                        if ph == 'q':
                            f = addfrag(si, TB3 + q, [(2 * k2) * 1024, (2 * k2 + 1) * 1024])
                            its.append((f, [(s.acc('q') + (q * 2 + lt) * 4, XN(lt, t), t == 0, q >= 3, 32) for lt in range(2)]))
                        else:
                            tau, mat = q >> 1, q & 1
                            f = addfrag(si, vTR1[tau], [(2 * k2 + mat) * 1024, (2 * k2 + mat) * 1024 + 512])
                            its.append((f, [(s.acc(ph) + (q * 4 + lt) * 4, XN(lt, t), t == 0, False, 32) for lt in range(4)]))
                    emit_chain(its)
            groups.append(([], [], "ph0_done" if ph == 'q' else f"blk{ph}_done"))
        for k in range(5):
            si = s.PH + k
            nk = 4 if k < 4 else 2
            order = [([kk], mat) for kk in range(nk) for mat in range(2)] if ch == 1 else [([k0, k0 + 1], mat) for k0 in range(0, nk, 2) for mat in range(2)]
            for kks, mat in order:
                its = []
                for k2 in kks:
                    o = (k2 & 1) * 8192 + ((k2 >> 1) * 2 + mat) * 1024
                    f = addfrag(si, vTRh, [o, o + 256])
                    t = 4 * k + k2
                    its.append((f, [(ACC[0] + (mat * 4 + lt) * 4, XN(lt, t), t == 0, False, 32) for lt in range(4)]))
                emit_chain(its)
            if k < 4: groups.append(([], [], f"hs{k}_done"))
        groups.append(([], [], "half_done"))
        U = 0
        for nb, kss in s.seg:
            k = 0
            while k < len(kss):
                ksl = [kss[k]]
                if ch == 2 and k + 1 < len(kss) and kss[k] < 10 and kss[k + 1] < 10 and U % 2 == 0: ksl.append(kss[k + 1])
                for tau in range(2):
                    its = []
                    for d, ks in enumerate(ksl):
                        if ks < 10:
                            si = s.P2 + (U + d) // 4; u = (U + d) % 4
                            f = addfrag(si, vTR2[tau], [u * 1024, u * 1024 + 8192])
                        else:
                            f = addfrag(s.P2 + (U - 1) // 4, vK16, [nb * 128 + tau * 32], static=True)
                        its.append((f, [(s.p2acc(nb) + (lt * 2 + tau) * 4, XN(lt, ks, 4 if ks < 10 else 2), ks == 0, False, 32 if ks < 10 else 16) for lt in range(4)]))
                    emit_chain(its)
                U += sum(1 for ks in ksl if ks < 10); k += len(ksl)
            if kss[-1] == 10: groups.append(([], [], f"nb{nb}_done"))
        s.frags = frags; s.groups = groups

    def isq(s, si): return s.pst0['q'] <= si < s.pst0['q'] + 9
    def acc(s, ph):
        if ph == 4: return ACC[0]
        return ACC[(s.phases.index(ph) + 1) & 1]
    def p2acc(s, nb):
        order = [ACC[0] + 32, XV, ACC[0]]
        return order[nb % 3]
    def fragreg(s, f): return s.freg[f]
    def read_items(s, f):
        si, base, offs = s.frags[f]
        regs = {f"v{s.fragreg(f)+k}" for k in range(4)}
        assert not any(((it['ins'].rd | it['ins'].wr) & regs) or (f"v{base}" in it['ins'].wr) for it in s.F.items), ("frag reg conflict", f)
        return [I(f"ds_read_b64_tr_b16 {R(s.fragreg(f) + 2 * k, 2)}, v{base} offset:{o}") for k, o in enumerate(offs)]

    def flush(s, pred=None):
        need = []
        seen = set()
        def visit(it):
            if id(it) in seen or it['at'] is not None: return
            seen.add(id(it))
            for d, _ in it['deps']: visit(d)
            if it['gate'] is not None and it['gate'] not in s.gates:
                for m in s.F.items:
                    if isinstance(m['ins'], Mark) and m['ins'].gate == it['gate']: visit(m)
        for it in list(s.F.items):
            if pred is None or pred(it): visit(it)
        n = len(seen)
        while True:
            todo = [it for it in s.F.items if id(it) in seen]
            if not todo: break
            rdy = [it for it in todo if s.F.ready(it, s.gates)]
            if rdy:
                s.e(s.F.take(rdy[0])); s.F.clock += 1; continue
            lat = [it for it in todo if (it['gate'] is None or it['gate'] in s.gates) and all(d[0]['at'] is not None for d in it['deps'])]
            if lat: s.F.clock += 1; continue
            assert s.pending_marks, [it['ins'].text for it in todo[:5]]
            vm = [m.vm for m in s.pending_marks if m.vm is not None]
            s.barrier(vm[-1] if vm else None)
            s.nextra += 1
        s.flushlog.append(n)

    def run_backbone(s, hooks):
        nfr = len(s.frags)
        rq = []
        st = dict(nextread=0, cur=-1, lastread_gap=-99, lastvm=-99, opened=0, lastdsw=-99)
        dq = []
        mlist = []
        for gi, (fids, ms, hook) in enumerate(s.groups):
            if hook: mlist.append(('hook', hook)); continue
            for k, m in enumerate(ms): mlist.append(('m', fids, m, k == 0, k == len(ms) - 1))
        firstuse = {}; lastuse = {}
        gap = 0
        hg = {}; fop = {}
        for ent in mlist:
            if ent[0] == 'm':
                for f in ent[1]:
                    firstuse.setdefault(f, gap); lastuse[f] = gap
                fop.setdefault(('half_done' in hg, ent[2][2]), gap)
                gap += 1
            else: hg[ent[1]] = gap
        hn = lambda ph: hg['ph0_done'] if ph == 'q' else hg[f'blk{ph}_done']
        nxt_end = lambda ph: hn(s.phases[s.phases.index(ph) + 1])
        dl = {'ph0': nxt_end('q') - 4, 'q': nxt_end('q') - 2, 'gelu0': nxt_end(0) - 2, 'gelu1': nxt_end(1) - 2, 'gelu2': nxt_end(2) - 2,
              'gelu3': fop[(True, XN(0, 6))] - s.dlm, 'gelu4': fop[(True, XN(0, 8))] - s.dlm, 'att': fop[(True, XN(0, 9))] - s.dlm}
        for b in range(9):
            dl[f'ln{b}'] = fop[(False, XN(0, 2 * b))] - (12 if s.order == 0 else s.lnlead)
            d1 = min(fop[(False, XN(2, 2 * b))] - 10, 288 + 40)
            dl[f'lp{b}'] = min(d1, fop[(False, XN(1, 2 * (b + 5)))] - 72 - (0 if s.order == 0 else s.lnlead)) if b < 4 else d1
        cost = lambda it: 0 if it['ins'].kind in ('label', 'salu', 'wait') else (2 if it['ins'].kind in ('trans', 'dsw', 'vm', 'sctl', 'mfma') else 1)
        st['def'] = 0.0
        def open_stage(si):
            X0 = len(s.stages) - s.NX
            if si >= X0:
                if s.slot(si) % 65536 == 0:
                    for t_ in range(2): s.e(f"v_add_u32 v{vTR2[t_]}, 65536, v{vTR2[t_]}")
                st['cur'] = si; hooks(f"stage{si}")
                return
            while any(x.tag in [f"st{k}" for k in range(si + 2)] for x in dq): s.e(dq.pop(0))
            fine = (2 <= s.pst < 99 and s.pst <= si < s.pst + 7) or (s.pst >= 100 and s.pst - 100 <= si < s.pst - 94)
            if fine: s.stamp('p', True, True)
            s.barrier(f"st{si}")
            if fine: s.stamp('p', True, True)
            st['cur'] = si; st['opened'] = gap
            if 'hfree' in s.gates and s.xq and (si + 3 < X0):
                left = X0 - 3 - si
                for _ in range(-(-len(s.xq) // left)): dq.extend(s.xq.pop(0))
            if si + 3 < X0 and si >= 1: dq.extend(s.dma_items(si + 3))
            if si + 3 == X0 - 1: assert not s.xq
            dq.extend(s.pf_items(si))
            hooks(f"stage{si}")
        def vmgap():
            n = sum(1 for x in dq if x.kind == 'vm')
            left = 30 - (gap - st['opened'])
            return max(2, min(s.dmagap, left // max(n, 1)))
        def can_read(f, gap):
            p = s.fprev[f]
            return p < 0 or lastuse[p] <= gap
        gap = -1
        s.xq = []
        for si in range(len(s.stages) - s.NX, len(s.stages)):
            d = s.dma_items(si)
            s.xq.append(d[:5])
            if len(d) > 5: s.xq.append([I(d[0].text)] + d[5:])
        open_stage(0)
        dq.extend(s.dq0)
        while st['nextread'] < 4:
            for x in s.read_items(st['nextread']): s.e(x)
            st['nextread'] += 1
        s.e(Wait(regs=[f"v{s.fragreg(f)+k}" for f in mlist[0][1] for k in range(4)]))
        gap = -1
        LA = s.D * 4
        for idx, ent in enumerate(mlist):
            if ent[0] == 'hook':
                hooks(ent[1]); continue
            gap += 1
            _, fids, (k, acc, other, first, swap, K), isfirst, islast = ent
            fr = s.fragreg(fids[k])
            n = 4 if K == 32 else 2
            A, B = R(fr, n), other
            if swap: A, B = B, A
            C = "0" if first else R(acc, 4)
            op = "v_mfma_f32_16x16x32_bf16" if K == 32 else "v_mfma_f32_16x16x16_bf16"
            mi = I(f"{op} {R(acc,4)}, {A}, {B}, {C}")
            if any((it['ins'].wr & (mi.rd | mi.wr)) or (it['ins'].rd & mi.wr) for it in s.F.items):
                s.flush(lambda it: bool((it['ins'].wr & (mi.rd | mi.wr)) or (it['ins'].rd & mi.wr)))
            s.e(mi)
            s.F.clock += 2
            sc = True; v = 2
            def refill():
                nonlocal sc, v
                f = st['nextread']
                if rq or f >= nfr or not can_read(f, gap) or firstuse[f] - gap > LA: return
                si = s.frags[f][0]
                if si > st['cur'] and si >= len(s.stages) - s.NX:
                    open_stage(si)
                elif si > st['cur']:
                    if gap - st['lastread_gap'] < s.bdelay and firstuse[f] - gap > 8: return
                    if v < 2: return
                    open_stage(si); sc = False; v = 0
                rq.extend((x, f) for x in s.read_items(f)); st['nextread'] += 1
            nxt = None
            if islast:
                nxt = next((x for x in mlist[idx + 1:] if x[0] == 'm'), None)
            if nxt is not None:
                mx = max(nxt[1])
                while st['nextread'] <= mx or (rq and rq[0][1] <= mx):
                    if not rq:
                        f = st['nextread']; si = s.frags[f][0]
                        if si > st['cur']: open_stage(si)
                        rq.extend((x, f) for x in s.read_items(f)); st['nextread'] += 1
                    s.e(rq.pop(0)[0]); v -= 1; s.late += 1
                regs = [f"v{s.fragreg(f)+q}" for f in nxt[1] for q in range(4)]
                for m2 in mlist[idx + 1: idx + 9]:
                    if m2[0] == 'm' and m2[1] is nxt[1]: regs += list(I(f"v_mov_b32 v0, {m2[2][2]}").rd)
                s.e(Wait(regs=regs)); sc = False
            refill()
            slack = (firstuse[rq[0][1]] - gap) if rq else 99
            if dq and dq[0].kind == 'valu' and v > 0 and not rq:
                s.e(dq.pop(0)); v -= 1; sc = False
            if sc and dq and dq[0].kind == 'salu':
                s.e(dq.pop(0)); sc = False
                if dq and dq[0].kind == 'salu' and v == 2 and not rq:
                    s.e(dq.pop(0)); v -= 1
            elif v == 2 and sc and s.stprio and slack > 9 and any(it['ins'].kind == 'vm' and it['group'].startswith('ep') and s.F.ready(it, s.gates) for it in s.F.items):
                it = next(it for it in s.F.items if it['ins'].kind == 'vm' and it['group'].startswith('ep') and s.F.ready(it, s.gates))
                s.e(s.F.take(it)); v = 0; s.F.clock += 2
            elif v == 2 and sc and dq and dq[0].kind == 'vm' and slack > 9 and gap - st['lastvm'] >= vmgap():
                s.e(dq.pop(0)); v = 0; st['lastvm'] = gap
            elif sc:
                for it in s.F.items:
                    if it['ins'].kind in ('salu', 'label', 'wait') and s.F.ready(it, s.gates):
                        s.e(s.F.take(it)); sc = False; break
            if v == 2 and rq:
                s.e(rq.pop(0)[0]); v -= 1; st['lastread_gap'] = gap
                pair = bool(rq) and s.isq(s.frags[rq[0][1]][0])
                refill()
                if rq and v == 1 and (pair or firstuse[rq[0][1]] - gap < LA - s.ddslack):
                    s.e(rq.pop(0)[0]); v -= 1
            rate = 0.0; acc_c = 0
            for gname, d in sorted(((g_, d_) for g_, d_ in dl.items()), key=lambda x: x[1]):
                c_ = sum(cost(it) for it in s.F.items if it['group'] == gname)
                if c_ == 0: continue
                acc_c += c_
                rate = max(rate, acc_c / max(d - gap, 1))
            st['def'] = min(st['def'] + rate, 6.0) if rate > 0 else 0.0
            extra = 0
            while v > 0 or (st['def'] >= s.defth and extra < 4):
                cand = None
                rdy = [it for it in s.F.items if s.F.ready(it, s.gates)]
                if v == 2:
                    big = [it for it in rdy if it['ins'].kind in ('trans', 'sctl', 'mfma', 'dsr') or (it['ins'].kind == 'dsw' and gap - st['lastdsw'] >= (s.dswgap if '128' in it['ins'].op else (s.dswgap + 1) // 2)) or (it['ins'].kind == 'vm' and sc and gap - st['lastvm'] >= s.fvmgap)]
                    if big: cand = big[0]
                elif s.S[-1].kind == 'dsr':
                    big = [it for it in rdy if it['ins'].kind == 'dsr']
                    if big: cand = big[0]
                if cand is None and st['def'] >= s.defth:
                    any_ = [it for it in rdy if it['ins'].kind in ('valu', 'salu', 'label', 'wait', 'trans', 'dsw', 'mfma', 'dsr') and it['group'] in dl and not (it['ins'].kind == 'dsw' and gap - st['lastdsw'] < 2)]
                    if any_: cand = any_[0]
                if cand is None and v > 0:
                    sm = [it for it in rdy if it['ins'].kind in ('valu', 'salu', 'label', 'wait')]
                    if sm: cand = sm[0]
                if cand is None: break
                kd = cand['ins'].kind
                if kd == 'vm' and s.fvmreset: st['lastvm'] = gap
                if kd == 'dsw': st['lastdsw'] = gap
                if cand['group'] in dl: st['def'] -= cost(cand)
                s.e(s.F.take(cand))
                if kd in ('label',): continue
                c = 2 if kd in ('trans', 'dsw', 'vm', 'sctl', 'mfma') else 1
                if c > v: extra += c - max(v, 0); s.novf += c - max(v, 0)
                v -= c; s.F.clock += c
            st['def'] = max(st['def'], -4.0)
            s.F.clock += max(v, 0)
        while dq: s.e(dq.pop(0))

    def phi(s, r, t, grp, nb):
        F = s.F
        F.add(f"v_mul_f32 v{t}, s{sL2E}, v{r}", nb, grp)
        F.add(f"v_min_f32 v{t}, 0, v{t}", nb, grp)
        F.add(f"v_exp_f32 v{t}, v{t}", nb, grp)
        if s.alpha: F.add(f"v_fma_f32 v{r}, v{r}, s{sIA}, v{vT2[6]}", nb, grp)
        else: F.add(f"v_add_f32 v{r}, s{sEPS}, v{r}", nb, grp)
        F.add(f"v_max_f32 v{r}, s{sEPS}, v{r}", nb, grp)
        F.add(f"v_add_f32 v{r}, v{r}, v{t}", nb, grp)

    def ph0_epilogue(s):
        F = s.F; nb = F.clock + 10; g = 'ph0'
        A = s.acc('q')
        tmp = vT + vT2[3:6]; ti = 0
        if s.alpha: F.add(f"v_mov_b32 v{vT2[6]}, s{sEPS}", 0, g)
        reg = lambda T, lt, r: A + (T * 2 + lt) * 4 + r
        for T in (3, 4):
            for q in range(8):
                s.phi(reg(T, 0, q), tmp[ti % len(tmp)], g, nb); ti += 1
        if s.alpha:
            for T in (5, 6):
                for q in range(8): F.add(f"v_mul_f32 v{reg(T,0,q)}, s{sIA}, v{reg(T,0,q)}", nb, g)
        for q in range(8):
            r = reg(7, 0, q); t = tmp[ti % len(tmp)]; ti += 1
            t2 = WIN + 8 + q
            if s.alpha: F.add(f"v_mul_f32 v{t2}, s{sIA}, v{r}", nb, g)
            else: F.add(f"v_mov_b32 v{t2}, v{r}", nb, g)
            s.phi(r, t, g, nb)
            F.add(f"v_cndmask_b32 v{r}, v{t2}, v{r}, s[{sMK}:{sMK+1}]", nb, g)
            F.add(f"v_cndmask_b32 v{r}, v{r}, 1.0, s[{sM1}:{sM1+1}]", nb, g)
        for T in (3, 4, 5, 6, 7):
            for q in range(4): F.add(f"v_cvt_pk_bf16_f32 v{reg(T,0,q)}, v{reg(T,0,2*q)}, v{reg(T,0,2*q+1)}", nb, g)
        kf = {0: reg(3, 0, 0), 1: reg(4, 0, 0), 2: reg(7, 0, 0)}
        vf = {0: reg(5, 0, 0), 1: reg(6, 0, 0), 2: reg(7, 0, 0)}
        dst = [reg(3, 1, 0), reg(4, 1, 0), reg(5, 1, 0), reg(6, 1, 0), reg(7, 1, 0), WIN + 8, WIN + 12, WIN + 16]
        for n, (kx, vy) in enumerate(KVPROD):
            F.add(f"v_mfma_f32_16x16x32_bf16 {R(dst[n],4)}, {R(kf[kx],4)}, {R(vf[vy],4)}, 0", nb, g)
        for n in range(8):
            F.add(f"v_add_u32 v{WIN+n}, s{sM0}, v{WIN+n}", 0, g)
            F.add(f"ds_write_b128 v{WIN+n}, {R(dst[n],4)}", nb, g, barrier_dep='xr8')
        F.add(Mark('kvs'), nb, g)
        t = WIN + 22
        F.add(f"v_min_u32 v{t}, 3056, v{vREC}", 0, g)
        F.add(f"v_add_u32 v{t}, {KVS}, v{t}", 0, g)
        for w in range(4):
            F.add(f"ds_read_b128 {R(WIN+4*w,4)}, v{t} offset:{w*4096}", 0, g, barrier_dep='kvs')
        for w in (1, 3):
            for q in range(4): F.add(f"v_add_f32 v{WIN+4*(w-1)+q}, v{WIN+4*(w-1)+q}, v{WIN+4*w+q}", 0, g)
        for q in range(4): F.add(f"v_add_f32 v{WIN+q}, v{WIN+q}, v{WIN+8+q}", 0, g)
        F.add(f"s_mul_i32 s{sT[0]}, s{sMT}, 3072", 0, g)
        F.add(f"s_add_u32 s{sT[0]}, s{sT[0]}, s{sREC}", 0, g)
        F.add(I(f"buffer_store_dwordx4 {R(WIN,4)}, v{vREC}, {srd(sWS)}, s{sT[0]} offen sc1", tag='rec'), 0, g)
        F.add(Mark('recdone', vm='rec'), 0, g)
        s.flag(1, WIN + 20, g, 'recdone')
        for T in (0, 1, 2):
            for q in range(8):
                s.phi(reg(T, 0, q), tmp[ti % len(tmp)], 'q', nb); ti += 1
        for lt in range(2):
            for h in range(2):
                F.add(f"v_cvt_pk_bf16_f32 v{PQ+lt*6+h}, v{reg(2,lt,2*h)}, v{reg(2,lt,2*h+1)}", nb, 'q')
                F.add(f"v_cvt_pk_bf16_f32 v{PQ+lt*6+2+h}, v{reg(0,lt,2*h)}, v{reg(0,lt,2*h+1)}", nb, 'q')
                F.add(f"v_cvt_pk_bf16_f32 v{PQ+lt*6+4+h}, v{reg(1,lt,2*h)}, v{reg(1,lt,2*h+1)}", nb, 'q')

    def flag(s, val, tmp, g, gate=None, direct=False):
        ins = [I(f"v_mov_b32 v{tmp}, {val}"), I(f"buffer_store_dword v{tmp}, off, {srd(sWS)}, s{sFLG} sc1", tag=f'fl{val}')]
        if direct:
            for x in ins: s.e(x)
            return None
        s.F.add(ins[0], 0, g)
        return s.F.add(ins[1], 0, g, barrier_dep=gate)

    def poll(s, name, load, vflag, need, rd, g, direct=False, after=None, sleep=16):
        chk = [f"v_cmp_gt_u32 vcc, {need}, v{vflag}", f"s_cbranch_vccnz L_sp_{name}", f"L_bk_{name}:"]
        s.tail += [f"L_sp_{name}:", f"s_mov_b32 s{sSPIN}, 0", f"L_lp_{name}:", f"s_sleep {sleep}", load, "s_waitcnt vmcnt(0)",
                   f"s_add_u32 s{sSPIN}, s{sSPIN}, 1", f"s_cmp_gt_u32 s{sSPIN}, 0x40000", f"s_cbranch_scc1 L_bk_{name}",
                   f"v_cmp_gt_u32 vcc, {need}, v{vflag}", "s_nop 1", f"s_cbranch_vccnz L_lp_{name}", f"s_branch L_bk_{name}"]
        raw = Raw(chk, rd=rd, wr=[f"v{vflag}", f"s{sSPIN}", "scc"])
        if direct: return I(load), raw
        it = s.F.add(I(load), 0, g)
        for p in (after or []): it['deps'].append((p, s.pdelay))
        return s.F.add(raw, 0, g)

    def rr_addr(s, n):
        va, vx, t = (TB3, TB3 + 1, TB3 + 4) if n == 2 else (TB3 + 2, TB3 + 3, TB3 + 4)
        sh = {2: 1, 1: 2}[n]
        pre = [f"s_and_b32 s57, s{sW}, {(1<<sh)-1}", f"s_lshl_b32 s57, s57, 6", f"v_add_u32 v{va}, s57, v{vLane}", f"v_lshlrev_b32 v{va}, {4-sh}, v{va}",
               f"v_bfe_u32 v{vx}, v{va}, 4, 4", f"v_mul_u32_u24 v{vx}, 1152, v{vx}", f"v_lshrrev_b32 v{t}, 8, v{va}", f"v_lshl_add_u32 v{vx}, v{t}, 3, v{vx}",
               f"v_bfe_u32 v{t}, v{va}, 3, 1", f"v_lshl_add_u32 v{vx}, v{t}, 5, v{vx}"]
        if n == 1: pre += [f"v_and_b32 v{t}, 4, v{va}", f"v_add_u32 v{vx}, v{t}, v{vx}"]
        return pre
    def rr(s, b0, pk=False):
        n = 2 if b0 < 8 else 1
        r = b0 // 2
        LB = [ACC[1], ACC[1] + 32, ACC[0] + 32, XV, FR][r]
        SB = [WIN, WIN + 8, WIN + 16, PQ, TB3 + 8][r]
        X = SB + 2 * n; vf = SB + 3 * n
        sL, sXo = [(57, 58), (63, 67), (sT[4], sT[5]), (36, 37), (38, 39)][r]
        va, vx = (TB3, TB3 + 1) if n == 2 else (TB3 + 2, TB3 + 3)
        T = (TB3 + 4, TB3 + 5, TB3 + 6, TB3 + 7)
        sh = {2: 1, 1: 2}[n]; sfx = {2: "x2", 1: ""}[n]
        pre = [f"s_lshr_b32 s{sL}, s{sW}, {sh}", f"s_add_u32 s{sL}, s{sL}, {b0}", f"s_lshl_b32 s{sXo}, s{sL}, 7", f"s_add_u32 s{sXo}, s{sXo}, s{sXB}",
               f"s_lshl_b32 s{sL}, s{sL}, 14", f"s_add_u32 s{sL}, s{sL}, s{sRB}"]
        load = f"buffer_load_dword v{vf}, v{vFP}, {srd(sWS)}, s{sFB} offen sc1"
        loads = [f"buffer_load_dword{sfx} {R(X,n)}, v{vx}, {srd(sX)}, s{sXo} offen"]
        for k in range(16):
            loads.append(f"buffer_load_dword{sfx} {R(LB+n*k,n)}, v{va}, {srd(sWS)}, s{sL} offen sc1")
            if k < 15: loads.append(f"s_add_u32 s{sL}, s{sL}, {PSTRIDE_J}")
        fin = []
        for k in range(16):
            for q in range(n):
                x = LB + n * k + q
                if k == 0: fin += [f"v_lshlrev_b32 v{SB+2*q}, 16, v{x}", f"v_and_b32 v{SB+2*q+1}, 0xffff0000, v{x}"]
                elif pk:
                    t = T[2 * ((k * n + q) % 2)]
                    fin += [f"v_lshlrev_b32 v{t}, 16, v{x}", f"v_and_b32 v{t+1}, 0xffff0000, v{x}", f"v_pk_add_f32 {R(SB+2*q,2)}, {R(SB+2*q,2)}, {R(t,2)}"]
                else:
                    t = T[(k * n + q) % 4]
                    fin += [f"v_lshlrev_b32 v{t}, 16, v{x}", f"v_and_b32 v{x}, 0xffff0000, v{x}", f"v_add_f32 v{SB+2*q}, v{SB+2*q}, v{t}", f"v_add_f32 v{SB+2*q+1}, v{SB+2*q+1}, v{x}"]
        c = f32(1.0 / (s.al * s.al))
        for q in range(n):
            t = T[q]
            fin += [f"v_lshlrev_b32 v{t}, 16, v{X+q}", f"v_and_b32 v{X+q}, 0xffff0000, v{X+q}",
                    f"v_fmamk_f32 v{SB+2*q}, v{SB+2*q}, {c}, v{t}", f"v_fmamk_f32 v{SB+2*q+1}, v{SB+2*q+1}, {c}, v{X+q}",
                    f"v_cvt_pk_bf16_f32 v{X+q}, v{SB+2*q}, v{SB+2*q+1}"]
        fin += [f"buffer_store_dword{sfx} {R(X,n)}, v{vx}, {srd(sOUT)}, s{sXo} offen{['', ' sc1', ' nt', ' sc0 sc1'][s.ofl]}"]
        return dict(pre=pre, load=load, vf=vf, need=2 + b0 + n - 1, loads=loads, fin=fin, name=f"r{b0}")

    def rr_poll(s, b0):
        r = s.rr(b0); g = f'rr{b0}'; F = s.F; n0 = len(F.items)
        F.vmlat = s.plat
        s.pollit[b0] = s.poll(r['name'], r['load'], r['vf'], r['need'], [f"v{vFP}", f"s{sFB}"], g, after=[s.flagit[b0 + 1]])
        F.items[:] = F.items[n0:] + F.items[:n0]
    def rr_body(s, b0):
        r = s.rr(b0); g = f'rr{b0}'; F = s.F; n0 = len(F.items)
        F.vmlat = s.vmlat
        for x in r['pre']: F.add(x, 0, g)
        for x in r['loads']:
            it = F.add(x, 0, g)
            if it['ins'].kind == 'vm':
                it['gate'] = 'ldok'
                it['deps'].append((s.pollit[b0], 1))
                if s.lastld is not None: it['deps'].append((s.lastld, s.ldsp))
                s.lastld = it
        F.items[:] = F.items[n0:] + F.items[:n0]
        for x in r['fin']: F.add(x, 0, g + 'f')

    def gelu(s, b):
        F = s.F; nb = F.clock + 10; g = f'gelu{b}'
        half = (b == 4)
        A = s.acc(b)
        tmp = (vT if not (b == 0 and s.order == 1) else vT[:3]) + vT2[3:6]; ti = 0
        hg_ = 'xr8' if b == 0 else None
        for lt in range(4):
            for tau in range(1 if half else 2):
                G0 = A + ((tau * 2) * 4 + lt) * 4; U0 = G0 + 16
                for r in range(4):
                    G = G0 + r; U = U0 + r; t = tmp[ti % len(tmp)]; ti += 1
                    F.add(f"v_fma_f32 v{t}, v{G}, v{G}, s{sK}", nb, g)
                    F.add(f"v_mul_f32 v{U}, v{G}, v{U}", nb, g)
                    F.add(f"v_mul_f32 v{G}, v{t}, v{G}", nb, g)
                    if not s.alpha: F.add(f"v_mul_f32 v{G}, s{sC1}, v{G}", nb, g)
                    F.add(f"v_exp_f32 v{G}, v{G}", nb, g)
                    F.add(f"v_add_f32 v{G}, 1.0, v{G}", nb, g)
                    F.add(f"v_rcp_f32 v{G}, v{G}", nb, g)
                    F.add(f"v_mul_f32 v{U}, v{U}, v{G}", nb, g)
                D0 = A + lt * 4
                for h in range(2):
                    F.add(f"v_cvt_pk_bf16_f32 v{D0+tau*2+h}, v{U0+2*h}, v{U0+2*h+1}", nb, g)
                if not half and s.w64:
                    F.add(f"ds_write_b64 v{vHW[lt>>1]}, {R(A+lt*4+tau*2,2)} offset:{b*16384+(lt&1)*1024+tau*8}", nb, g, barrier_dep=hg_)
            if not half:
                if not s.w64: F.add(f"ds_write_b128 v{vHW[lt>>1]}, {R(A+lt*4,4)} offset:{b*16384+(lt&1)*1024}", nb, g, barrier_dep=hg_)
            else:
                F.add(f"ds_write_b64 v{vHH[lt>>1]}, {R(A+lt*4,2)} offset:{(lt&1)*1024}", nb, g)
        F.add(Mark(f'h{b}'), nb, g)

    def attn_finish(s):
        F = s.F; g = 'att'
        W = WIN
        F.add(f"v_mov_b32 v{W+20}, 0", 0, g)
        s.poll('init', f"global_load_dword v{W+21}, v{W+20}, s[20:21] sc1", W + 21, 256, [f"v{W+20}"], g, sleep=64)
        F.add(f"v_and_b32 v{W+20}, 15, v{vLane}", 0, g); F.add(f"v_lshlrev_b32 v{W+20}, 13, v{W+20}", 0, g)
        F.add(f"s_and_b32 s{sT[1]}, s{sFLG}, {~(15<<13) & 0xffffffff}", 0, g)
        s.poll('kv', f"buffer_load_dword v{W+21}, v{W+20}, {srd(sWS)}, s{sT[1]} offen sc1", W + 21, 1, [f"v{W+20}", f"s{sT[1]}"], g)
        for bt in range(4):
            for q in range(4):
                m = bt * 4 + q
                F.add(f"s_add_u32 s{sT[3]}, s{sREC}, {m*3072}", 0, g)
                F.add(I(f"buffer_load_dwordx4 {R(W+4*q,4)}, v{vREC}, {srd(sWS)}, s{sT[3]} offen sc1"), 0, g)
            for q in (0, 2):
                for r in range(4): F.add(f"v_add_f32 v{W+4*q+r}, v{W+4*q+r}, v{W+4*q+4+r}", 0, g)
            for r in range(4):
                if bt == 0: F.add(f"v_add_f32 v{W+16+r}, v{W+r}, v{W+8+r}", 0, g)
                else:
                    F.add(f"v_add_f32 v{W+r}, v{W+r}, v{W+8+r}", 0, g)
                    F.add(f"v_add_f32 v{W+16+r}, v{W+16+r}, v{W+r}", 0, g)
        GA = TB3
        for r in range(4): F.add(f"v_and_b32 v{W+16+r}, v{W+16+r}, v{GA+10+(r>>1)}", 0, g)
        F.add(f"v_min_u32 v{W+20}, 3072+16, v{vREC}", 0, g)
        F.add(f"v_add_u32 v{W+20}, {SUMB}, v{W+20}", 0, g)
        F.add(f"ds_write_b128 v{W+20}, {R(W+16,4)}", 0, g)
        F.add(Mark('sum'), 0, g)
        OUT = W + 12; RC = W + 20
        def tile(lo, hi, f1, name):
            first = True
            if lo is not None: F.add(f"ds_read_b128 {R(W,4)}, v{GA+lo}", 0, g, barrier_dep='sum')
            F.add(f"ds_read_b128 {R(W+4,4)}, v{GA+hi}", 0, g, barrier_dep='sum')
            if f1 is not None: F.add(f"ds_read_b128 {R(W+8,4)}, v{GA+f1}", 0, g, barrier_dep='sum')
            for q in range(4):
                if lo is None and q < 2: F.add(f"v_mov_b32 v{W+q}, 0", 0, g)
                else: F.add(f"v_cvt_pk_bf16_f32 v{W+q}, v{W+2*q}, v{W+2*q+1}", 0, g)
            if f1 is not None:
                for q in range(2): F.add(f"v_cvt_pk_bf16_f32 v{W+8+q}, v{W+8+2*q}, v{W+8+2*q+1}", 0, g)
            for lt in range(2):
                F.add(f"v_mfma_f32_16x16x32_bf16 {R(OUT+4*lt,4)}, {R(W,4)}, {R(PQ+lt*6+2,4)}, 0", 0, g)
                if f1 is not None:
                    F.add(f"v_mfma_f32_16x16x16_bf16 {R(OUT+4*lt,4)}, {R(W+8,2)}, {R(PQ+lt*6,2)}, {R(OUT+4*lt,4)}", 0, g)
        tile(0, 1, 2, 'D')
        for lt in range(2):
            for h in range(2):
                F.add(f"v_add_f32 v{RC+2*lt+h}, s{sEPS}, v{OUT+4*lt+h}", 0, g)
                F.add(f"v_rcp_f32 v{RC+2*lt+h}, v{RC+2*lt+h}", 0, g)
                if s.alpha: F.add(f"v_mul_f32 v{RC+2*lt+h}, s{sA2}, v{RC+2*lt+h}", 0, g)
        ao = vT2[0]
        F.add(f"s_lshl_b32 s{sT[4]}, s{sW}, 13", 0, g)
        F.add(f"s_and_b32 s{sT[4]}, s{sT[4]}, 8192", 0, g)
        F.add(f"s_sub_u32 s{sT[4]}, {9*8192}, s{sT[4]}", 0, g)
        F.add(f"v_add_u32 v{ao}, s{sT[4]}, v{vHW[0]}", 0, g)
        def finish(which, off):
            for lt in range(2):
                for r in range(4):
                    o = OUT + 4 * lt + r
                    if which == 0: rc = RC + 2 * lt
                    elif which == 2 or r >= 2: rc = RC + 2 * lt + 1
                    else:
                        rc = W + 10 + lt
                        if r == 0: F.add(f"v_cndmask_b32 v{rc}, v{RC+2*lt+1}, v{RC+2*lt}, s[{sMG}:{sMG+1}]", 0, g)
                    F.add(f"v_mul_f32 v{o}, v{o}, v{rc}", 0, g)
                for h in range(2): F.add(f"v_cvt_pk_bf16_f32 v{OUT+4*lt+h}, v{OUT+4*lt+2*h}, v{OUT+4*lt+2*h+1}", 0, g)
                F.add(f"ds_write_b64 v{ao}, {R(OUT+4*lt,2)} offset:{off+lt*1024}", 0, g)
        tile(3, 4, None, 'T0'); finish(0, 0)
        tile(5, 6, 7, 'T1'); finish(1, 8)
        tile(None, 8, 9, 'T2'); finish(2, 8192)
        F.add(Mark('o'), 0, g)

    def p2_epilogue(s, nb_):
        F = s.F; nb = F.clock + 10; g = f'ep{nb_}'
        a0 = s.p2acc(nb_)
        so = (sT[(nb_ & 1) * 2], sT[(nb_ & 1) * 2 + 1])
        F.add(f"s_add_u32 s{so[0]}, s{sP}, {nb_*16384}", 0, g)
        F.add(f"s_add_u32 s{so[0]}, s{so[0]}, s{sROT}", 0, g)
        F.add(f"s_xor_b32 s{so[1]}, s{so[0]}, 1024", 0, g)
        if s.stcl and nb_ < 8: F.add(Mark(f'cl{nb_}'), 0, g + 'm')
        prev = None
        for lt in range(4):
            b = a0 + lt * 8
            for q in range(4): F.add(f"v_cvt_pk_bf16_f32 v{b+q}, v{b+2*q}, v{b+2*q+1}", nb, g)
            it = F.add(I(f"buffer_store_dwordx4 {R(b,4)}, v{vHW[lt>>1]}, {srd(sWS)}, s{so[lt&1]} offen sc1", tag=f'p{nb_}'), nb, g,
                       barrier_dep=(f'cl{nb_}' if s.stcl and nb_ < 8 else None))
            if prev is not None and nb_ < 8: it['deps'].append((prev, s.stsp))
            prev = it
        if nb_ in (1, 3, 5):
            wt = F.add(Wait(vm=[f'p{k}' for k in range(nb_ + 1)]), 0, g + 'f')
            for x in F.items:
                if x['ins'].kind == 'vm' and x['group'].startswith('ep'): wt['deps'].append((x, s.fdelay))
            s.flagit[nb_] = s.flag(2 + nb_, vT[(nb_ >> 1) & 1], g + 'f')

    def tbl_load(s, grp, dst):
        off = grp * 1024
        if off < 4096: return [f"global_load_dwordx4 {R(dst,4)}, v{vT[2]}, s[{sTB}:{sTB+1}] offset:{off}"]
        raise

    def touches(s, lo, n):
        regs = {f"v{r}" for r in range(lo, lo + n)}
        return lambda it: bool((it['ins'].rd | it['ins'].wr) & regs)

    def kernelA(s):
        e = s.e
        s.make_stages(); s.make_backbone()
        e("s_cmp_ge_u32 s2, 256"); e("s_cbranch_scc1 L_endA")
        e("s_load_dwordx16 s[4:19], s[0:1], 0"); e("s_load_dwordx4 s[20:23], s[0:1], 64")
        s.stamp(nowait=True)
        e(f"s_getpc_b64 s[{sTB}:{sTB+1}]"); e("L_pc:")
        e(f"s_lshr_b32 s3, s2, 3"); e("s_lshl_b32 s3, s3, 12"); e("v_lshl_add_u32 v2, v0, 4, s3"); e(f"v_min_u32 v2, L_codeend-L_pc-4, v2")
        e(f"global_load_dword v{vXW}, v2, s[{sTB}:{sTB+1}]")
        e(f"v_lshrrev_b32 v1, 6, v0"); e(f"v_readfirstlane_b32 s{sW}, v1")
        e(f"v_and_b32 v{vLane}, 63, v0")
        odd = sT[0]
        mp = s.mp
        e(f"s_bfe_u32 s{sJ}, s2, {((3-mp)<<16)|mp}"); e(f"s_lshl_b32 s{sJ}, s{sJ}, {1+mp}"); e(f"s_bfe_u32 s{odd}, s2, {((1+mp)<<16)|3}"); e(f"s_add_u32 s{sJ}, s{sJ}, s{odd}")
        e(f"s_and_b32 s{odd}, s{odd}, 1")
        e(f"s_lshr_b32 s{sMT}, s2, {4+mp}")
        if mp:
            e(f"s_and_b32 s{sT[1]}, s2, {(1<<mp)-1}"); e(f"s_lshl_b32 s{sT[1]}, s{sT[1]}, {4-mp}"); e(f"s_add_u32 s{sMT}, s{sMT}, s{sT[1]}")
        e(f"v_lshrrev_b32 v1, 3, v{vLane}"); e("v_mul_u32_u24 v1, 1152, v1"); e(f"v_and_b32 v3, 7, v{vLane}"); e("v_lshl_add_u32 v1, v3, 4, v1")
        e(f"s_lshl_b32 s{sT[1]}, s{sMT}, 2"); e(f"s_add_u32 s{sT[1]}, s{sT[1]}, s{sW}"); e(f"s_mul_i32 s{sT[1]}, s{sT[1]}, {32*1152}")
        e(f"s_lshr_b32 s{sROT}, s2, {mp}"); e(f"s_and_b32 s{sROT}, s{sROT}, {s.rot}"); e(f"s_mul_i32 s{sXO}, s{sROT}, 9216"); e(f"s_add_u32 s{sXO}, s{sXO}, s{sT[1]}")
        e(Wait(alllg=True))
        e(f"s_mov_b32 s{sX}, s4"); e(f"s_mov_b32 s{sX+1}, s5"); e(f"s_mov_b32 s{sX+2}, {2048*1152}"); e(f"s_mov_b32 s{sX+3}, 0x20000")
        def xreg(a, b):
            if b in (5, 6): return XV + ((b - 5) * 4 + a) * 4
            if b in (7, 8): return ACC[0] + ((b - 7) * 4 + a) * 4
            if a == 3: return ACC[0] + 32 + (b - 1) * 4 if b else ACC[1] + 60
            return ACC[1] + (a * 5 + b) * 4
        def xloads(a):
            out = []
            if a: out += [f"s_xor_b32 s{sXO}, s{sROT}, {a}", f"s_mul_i32 s{sXO}, s{sXO}, 9216", f"s_add_u32 s{sXO}, s{sXO}, s{sT[1]}"]
            for b in range(9): out.append(f"buffer_load_dwordx4 {R(xreg(a,b),4)}, v1, {srd(sX)}, s{sXO} offen offset:{b*128}")
            return out
        for a in range(s.xfirst):
            for x in xloads(a): e(x)
        if s.xpf:
            e(f"s_lshl_b32 s{sT[2]}, s{sJ}, 2"); e(f"s_add_u32 s{sT[2]}, s{sT[2]}, s{sW}"); e(f"s_mul_i32 s{sT[2]}, s{sT[2]}, 2304"); e(f"s_mul_i32 s{sT[3]}, s{sMT}, {128*1152}"); e(f"s_add_u32 s{sT[2]}, s{sT[2]}, s{sT[3]}")
            e(f"v_min_u32 v2, 17, v{vLane}"); e("v_lshlrev_b32 v2, 7, v2")
            e(f"buffer_load_dword v{vXW}, v2, {srd(sX)}, s{sT[2]} offen")
        for (b, p, n) in ((sQKV, 6, 576 * 3456), (sWO, 8, 576 * 1152), (sWG, 12, 576 * 9216), (sWU, 14, 576 * 9216), (sWD, 16, 4608 * 1152)):
            e(f"s_sub_u32 s{b}, s{p}, 4096"); e(f"s_subb_u32 s{b+1}, s{p+1}, 0"); e(f"s_mov_b32 s{b+2}, {n+4096}"); e(f"s_mov_b32 s{b+3}, 0x20000")
        e(f"s_mov_b32 s{sWS}, s22"); e(f"s_mov_b32 s{sWS+1}, s23"); e(f"s_mov_b32 s{sWS+2}, {WSREC}"); e(f"s_mov_b32 s{sWS+3}, 0x20000")
        e(f"s_lshl_b32 s{sM0}, s{sW}, 12")
        e(f"s_mul_i32 s{sQ}, s{sJ}, 72"); e(f"s_and_b32 s{sQ}, s{sQ}, -16"); e(f"s_add_u32 s{sQ}, s{sQ}, 4096")
        e(f"s_mul_i32 s{sG}, s{sJ}, 576"); e(f"s_add_u32 s{sG}, s{sG}, 4096")
        e(f"s_mul_i32 s{sD}, s{sJ}, {288*1152}"); e(f"s_add_u32 s{sD}, s{sD}, 4096")
        e(f"s_cmp_eq_u32 s{odd}, 0")
        e(f"s_cselect_b32 s{sT[2]}, 512, 0"); e(f"s_cselect_b32 s{sT[3]}, 0, 64"); e(f"s_cselect_b32 s{sT[4]}, {256*1152}, 0"); e(f"s_cselect_b32 s{sT[5]}, 0, {32*1152}")
        e(f"s_add_u32 s{sGh}, s{sG}, s{sT[2]}"); e(f"s_add_u32 s{sG}, s{sG}, s{sT[3]}"); e(f"s_add_u32 s{sDh}, s{sD}, s{sT[4]}"); e(f"s_add_u32 s{sD}, s{sD}, s{sT[5]}")
        e(f"s_mul_i32 s{sO}, s{sJ}, {36*1152}"); e(f"s_add_u32 s{sO}, s{sO}, 4096")
        e(f"s_lshr_b32 s{sT[2]}, s2, {4+mp}"); e(f"s_lshl_b32 s{sT[2]}, s{sT[2]}, 2"); e(f"s_add_u32 s{sT[2]}, s{sT[2]}, s{sW}"); e(f"s_mul_i32 s{sT[2]}, s{sT[2]}, {(9<<mp)*9216}")
        e(f"s_add_u32 s{sPG}, s{sG}, s{sT[2]}"); e(f"s_add_u32 s{sPGh}, s{sGh}, s{sT[2]}")
        e(f"s_lshr_b32 s{sT[2]}, s2, 3"); e(f"s_lshl_b32 s{sT[2]}, s{sT[2]}, 2"); e(f"s_add_u32 s{sT[2]}, s{sT[2]}, s{sW}")
        e(f"s_lshr_b32 s{sT[3]}, s{sJ}, {1+mp}")
        e(f"s_mul_i32 s{sPD}, s{sT[3]}, {(576<<mp)*1152}"); e(f"s_lshl_b32 s{sT[4]}, s{sT[2]}, {11+mp}"); e(f"s_add_u32 s{sPD}, s{sPD}, s{sT[4]}"); e(f"s_add_u32 s{sPD}, s{sPD}, 4096")
        e(f"s_mul_i32 s{sPO}, s{sT[3]}, {(72<<mp)*1152}"); e(f"s_add_u32 s{sPO}, s{sPO}, s{sT[4]}"); e(f"s_add_u32 s{sPO}, s{sPO}, 4096")
        e(f"s_cmp_lt_u32 s{sT[2]}, 41"); e(f"s_cselect_b32 s{sPO}, s{sPO}, 0x7ff00000")
        e(f"s_mul_i32 s{sT[3]}, s{sT[3]}, {144<<mp}"); e(f"s_and_b32 s{sT[3]}, s{sT[3]}, -128"); e(f"s_mul_i32 s{sT[2]}, s{sT[2]}, {14*1152}")
        e(f"s_add_u32 s{sPT}, s{sT[2]}, s{sT[3]}"); e(f"s_add_u32 s{sPT}, s{sPT}, 4096")
        assert mp <= 1
        e(f"v_lshrrev_b32 v2, {1+mp}, v{vLane}"); e("v_min_u32 v2, 13, v2"); e("v_mul_u32_u24 v2, 1152, v2"); e(f"v_and_b32 v{vPFg}, {(2<<mp)-1}, v{vLane}")
        if mp: e(f"v_min_u32 v{vPFg}, 2, v{vPFg}")
        e(f"v_lshl_add_u32 v5, v{vPFg}, 7, v2")
        e(f"v_min_u32 v{vPFg}, {(9<<mp)-1}, v{vLane}"); e(f"v_mul_u32_u24 v{vPFg}, 9216, v{vPFg}"); e(f"v_lshlrev_b32 v{vPFd}, {5+mp}, v{vLane}")
        e(f"s_mul_i32 s{sT[2]}, s{sW}, {8*9216}"); e(f"s_add_u32 s{sG}, s{sG}, s{sT[2]}"); e(f"s_lshl_b32 s{sT[2]}, s{sT[2]}, 1"); e(f"s_add_u32 s{sGh}, s{sGh}, s{sT[2]}")
        e(f"s_mul_i32 s{sT[2]}, s{sW}, 9216"); e(f"s_add_u32 s{sD}, s{sD}, s{sT[2]}"); e(f"s_add_u32 s{sDh}, s{sDh}, s{sT[2]}"); e(f"s_add_u32 s{sO}, s{sO}, s{sT[2]}")
        e(f"s_mul_i32 s{sP}, s{sJ}, {PSTRIDE_J}"); e(f"s_mul_i32 s{sT[2]}, s{sMT}, {PSTRIDE_M}"); e(f"s_add_u32 s{sP}, s{sP}, s{sT[2]}"); e(f"s_add_u32 s{sP}, s{sP}, {PBASE-HB}")
        e(f"s_mul_i32 s{sREC}, s{sJ}, {16*3072}"); e(f"s_add_u32 s{sREC}, s{sREC}, {RECB}")
        if s.wpf and s.qpfa == 0:
            e(f"buffer_load_dword v{vXW}, v5, {srd(sQKV)}, s{sPT} offen")
            if s.gpf0:
                for x in s.pf_gu(0): e(x)
        t5, t6 = vT2[4], vT2[5]
        e(f"v_lshrrev_b32 v3, 4, v{vLane}"); e(f"s_and_b32 s{sT[2]}, s{sW}, 1"); e(f"s_lshl_b32 s{sT[2]}, s{sT[2]}, 3")
        e(f"v_lshlrev_b32 v{t5}, 1, v3"); e(f"v_or_b32 v{t5}, s{sT[2]}, v{t5}"); e(f"v_and_b32 v{t6}, 15, v{vLane}"); e(f"v_xor_b32 v{t5}, v{t5}, v{t6}"); e(f"v_min_u32 v{t5}, 14, v{t5}")
        e(f"v_mul_u32_u24 v{t6}, 52, v{t5}"); e(f"v_lshrrev_b32 v{t6}, 8, v{t6}"); e(f"v_mul_u32_u24 v{t6}, {1152-80}, v{t6}"); e(f"v_lshl_add_u32 v{t5}, v{t5}, 4, v{t6}")
        e(f"s_lshl_b32 s{sT[2]}, s{sW}, 3"); e(f"v_add_u32 v2, s{sT[2]}, v3"); e("v_mul_u32_u24 v2, 3456, v2"); e(f"v_add_u32 v{vDMA0}, v2, v{t5}")
        vXW2 = PQ + 10
        e(f"s_mul_i32 s{sT[2]}, s{sW}, 20480"); e(f"s_add_u32 s{sT[2]}, s{sT[2]}, {HB}")
        e(f"s_xor_b32 s{sT[3]}, s{sW}, 1"); e(f"s_mul_i32 s{sT[3]}, s{sT[3]}, 20480"); e(f"s_add_u32 s{sT[3]}, s{sT[3]}, {HB}")
        e(f"v_lshlrev_b32 v{t5}, 1, v3"); e(f"v_xor_b32 v{t5}, v{t5}, v{vLane}"); e(f"v_lshlrev_b32 v{t5}, 4, v{t5}"); e(f"v_xor_b32 v{t6}, 16, v{t5}")
        e(f"v_add_u32 v{TB5}, s{sT[2]}, v{t5}"); e(f"v_add_u32 v{TB5+1}, s{sT[2]}, v{t6}"); e(f"v_add_u32 v{TB5+2}, s{sT[3]}, v{t5}"); e(f"v_add_u32 v{TB5+3}, s{sT[3]}, v{t6}")
        e(f"v_bfe_u32 v{t5}, v{vLane}, 2, 1"); e(f"v_and_b32 v{t6}, 3, v{vLane}"); e(f"v_lshl_add_u32 v2, v{t6}, 1, v{t5}"); e(f"v_lshrrev_b32 v3, 3, v{vLane}")
        e(f"v_xor_b32 v2, v2, v3"); e(f"v_lshl_add_u32 v2, v{t6}, 4, v2"); e(f"v_lshlrev_b32 v2, 4, v2"); e(f"v_lshl_add_u32 v2, v{t5}, 10, v2"); e(f"v_add_u32 v{vXW2}, s{sT[2]}, v2")
        e(f"s_and_b32 s{sT[2]}, s{sROT}, 1"); e(f"s_lshl_b32 s{sT[2]}, s{sT[2]}, 7"); e(f"v_add_u32 v{vXW2}, s{sT[2]}, v{vXW2}"); e(f"v_xor_b32 v{vXW2+1}, 128, v{vXW2}")
        e(f"s_add_u32 s{sTB}, s{sTB}, L_tbl-L_pc"); e(f"s_addc_u32 s{sTB+1}, s{sTB+1}, 0")
        vg, vr, vc, va, vb = WIN + 8, WIN + 9, WIN + 10, WIN + 11, WIN + 12
        sp = sT[4]
        e(f"s_and_b32 s{sp}, s{sW}, 1")
        e(f"v_lshrrev_b32 v{vg}, 4, v{vLane}"); e(f"v_bfe_u32 v{vr}, v{vLane}, 2, 2"); e(f"v_and_b32 v{vc}, 3, v{vLane}")
        e(f"v_lshrrev_b32 v2, 3, v{vLane}"); e(f"v_and_b32 v3, 7, v{vLane}")
        e(f"v_and_b32 v{va}, 2, v2"); e(f"v_xor_b32 v{va}, v{va}, v3"); e(f"s_lshl_b32 s{sT[2]}, s{sp}, 2"); e(f"v_xor_b32 v{va}, s{sT[2]}, v{va}")
        e(f"v_mul_u32_u24 v{vb}, 9216, v2"); e(f"v_lshl_add_u32 v{vDMA1}, v{va}, 4, v{vb}")
        e(f"v_lshlrev_b32 v{va}, 1, v{vg}"); e(f"v_xor_b32 v{va}, v{va}, v3"); e(f"v_mul_u32_u24 v{vb}, 1152, v2"); e(f"v_lshl_add_u32 v{vDMA2}, v{va}, 4, v{vb}")
        e(f"v_and_b32 v{va}, 2, v{vg}"); e(f"v_xor_b32 v{va}, v{va}, v{vc}"); e(f"v_lshrrev_b32 v{vb}, 2, v{vLane}"); e(f"v_mul_u32_u24 v{vb}, 9216, v{vb}"); e(f"v_lshl_add_u32 v{vDMAh}, v{va}, 4, v{vb}")
        e(f"v_and_b32 v2, 1, v{vg}")
        e(f"v_lshrrev_b32 v3, 1, v{vg}"); e(f"v_lshlrev_b32 v3, 12, v3"); e(f"v_lshl_add_u32 v3, v2, 9, v3")
        e(f"v_lshrrev_b32 v{va}, 1, v{vr}"); e(f"v_lshl_add_u32 v{va}, v2, 1, v{va}"); e(f"s_lshl_b32 s{sT[2]}, s{sp}, 1"); e(f"v_xor_b32 v{va}, s{sT[2]}, v{va}")
        e(f"v_lshlrev_b32 v{va}, 5, v{va}"); e(f"v_lshl_add_u32 v{va}, v{vr}, 7, v{va}"); e(f"v_lshl_add_u32 v{va}, v{vc}, 3, v{va}")
        e(f"v_lshl_add_u32 v{vTR1[0]}, v{vg}, 12, v{va}"); e(f"v_xor_b32 v{vTR1[1]}, 32, v{vTR1[0]}")
        e(f"v_add_u32 v{vTR2[0]}, v3, v{va}"); e(f"v_xor_b32 v{vTR2[1]}, 32, v{vTR2[0]}")
        e(f"v_xor_b32 v{va}, s{sp}, v2"); e(f"v_lshl_add_u32 v{va}, v{va}, 5, v3"); e(f"v_lshl_add_u32 v{va}, v{vr}, 6, v{va}"); e(f"v_lshl_add_u32 v{vTRh}, v{vc}, 3, v{va}")
        e(f"s_mul_i32 s{sT[2]}, s{sW}, 768"); e(f"v_lshl_add_u32 v{va}, v{vLane}, 4, s{sT[2]}"); e(f"v_mov_b32 v{vb}, 0x7ff00000")
        e(f"v_cmp_gt_u32 vcc, 48, v{vLane}"); e(f"v_cndmask_b32 v{vREC}, v{vb}, v{va}, vcc")
        e(f"s_lshl_b32 s{sT[2]}, s{sp}, 13"); e(f"s_lshl_b32 s{sT[3]}, s{sW}, 11"); e(f"s_add_u32 s{sT[2]}, s{sT[2]}, s{sT[3]}"); e(f"s_add_u32 s{sT[2]}, s{sT[2]}, {HB}")
        e(f"v_lshl_add_u32 v{vHW[0]}, v{vLane}, 4, s{sT[2]}"); e(f"v_xor_b32 v{vHW[1]}, 2048, v{vHW[0]}")
        e(f"v_lshlrev_b32 v3, 12, v{vg}"); e(f"v_lshl_add_u32 v3, v{vr}, 8, v3")
        e(f"v_lshl_add_u32 v2, v2, 2, v{vr}"); e(f"v_lshlrev_b32 v2, 5, v2")
        e(f"v_add_u32 v{va}, s{odd}, v{vc}"); e(f"v_lshlrev_b32 v{va}, 3, v{va}")
        for T, cst in ((0, 0), (1, 32), (3, 80), (4, 112), (5, 160), (6, 192)):
            e(f"v_add_u32 v{vb}, {cst}, v{va}"); e(f"v_xad_u32 v{TB3+T}, v{vb}, v2, v3")
        e(f"s_lshl_b32 s{sT[2]}, s{odd}, 3"); e(f"s_add_u32 s{sT[2]}, s{sT[2]}, 64"); e(f"v_xad_u32 v{TB3+2}, s{sT[2]}, v2, v3")
        e(f"v_and_b32 v{vb}, 1, v{vc}"); e(f"v_mul_u32_u24 v{vb}, 80, v{vb}"); e(f"s_add_u32 s{sT[2]}, s{sT[2]}, 80"); e(f"v_add_u32 v{vb}, s{sT[2]}, v{vb}"); e(f"v_xad_u32 v{TB3+7}, v{vb}, v2, v3")
        e(f"v_lshlrev_b32 v3, 4, v{vLane}")
        c0 = -2.0 * math.sqrt(2.0 / math.pi) * math.log2(math.e); c1 = c0 * 0.044715
        al = -((-c1) ** (1.0 / 3.0)) if s.alpha else 1.0
        s.al = al
        e(f"s_mov_b32 s{sK}, {f32(c0/al if s.alpha else c0/c1)}"); e(f"s_mov_b32 s{sC1}, {f32(al*al if s.alpha else c1)}")
        e(f"s_mov_b32 s{sL2E}, {f32(math.log2(math.e)/al)}"); e(f"s_mov_b32 s{sIA}, {f32(1.0/al)}"); e(f"s_mov_b32 s{sEPS}, {f32(1e-6)}")
        e(f"s_mov_b32 s{sMK}, 0x000f000f"); e(f"s_mov_b32 s{sMK+1}, 0x000f000f"); e(f"s_mov_b32 s{sM1}, 0xff00ff00"); e(f"s_mov_b32 s{sM1+1}, 0xff00ff00")
        e(f"s_mov_b32 s{sMG}, 0xffff"); e(f"s_mov_b32 s{sMG+1}, 0")
        e(f"s_mov_b32 s{sT[2]}, 0x3f803f80")
        e(f"s_lshl_b32 s{sFLG}, s{sMT}, 4"); e(f"s_add_u32 s{sFLG}, s{sFLG}, s{sJ}"); e(f"s_lshl_b32 s{sFLG}, s{sFLG}, 2"); e(f"s_add_u32 s{sFLG}, s{sFLG}, s{sW}")
        e(f"s_lshl_b32 s{sFLG}, s{sFLG}, 7"); e(f"s_add_u32 s{sFLG}, s{sFLG}, {FLAGB}")
        e(f"s_mov_b32 s{sT[4]}, s{sPT}")
        for q in range(4): e(f"v_mov_b32 v{PQ+q}, 0")
        e(f"v_mov_b32 v{PQ+4}, {ZQ}"); e(f"ds_write_b128 v{PQ+4}, {R(PQ,4)}")
        bx = []
        for a in range(s.xfirst, 4):
            bx += [I(x) for x in xloads(a)]
            if a == s.qpfa and s.wpf: bx.append(I(f"buffer_load_dword v{vXW}, v5, {srd(sQKV)}, s{sPT} offen"))
        bw = []
        for si in range(4):
            bw += s.dma_items(si)
            if si == s.gpfs and s.wpf and not s.gpf0: bw += s.pf_gu(0)
        def pop(q):
            while q:
                x = q.pop(0); e(x)
                if x.kind == 'vm': break
        tick = [0]
        def bgstep():
            if bx: pop(bx); return
            tick[0] += 1
            if tick[0] % s.wrate == 0: pop(bw)
        L = WIN + 8
        S1, S2, MU, RS = PQ + 4, PQ + 5, PQ + 6, PQ + 8
        F = s.F
        KEEP = {0: 252, 1: 254, 2: PQ + 2}
        assert min(s.jb0, s.jb1, s.jb2) >= max(5, s.jit0)
        wr_txt = lambda a, b: f"ds_write_b128 v{vXW2+(a&1)}, {R(xreg(a,b),4)} offset:{(b%5)*4096+(a>>1)*2048}"
        rd_txt = lambda lt, t: f"ds_read_b128 {XN(lt, t)}, v{TB5+(lt>>1)*2+(t&1)} offset:{((t>>1)%5)*4096+(lt&1)*2048+(t&1)*1024}"
        s.pstamp()
        for a in range(4):
            while any(x.kind == 'vm' and (x.wr & {f"v{xreg(a,8)}"}) for x in bx): pop(bx)
            e(f"v_mov_b32 v{S1}, 0"); e(f"v_mov_b32 v{S2}, 0")
            for b in range(9):
                for q in range(4):
                    x = xreg(a, b) + q
                    e(f"v_dot2c_f32_bf16 v{S1}, s{sT[2]}, v{x}"); e(f"v_dot2c_f32_bf16 v{S2}, v{x}, v{x}")
                    if q == 0 and (bx or (b & 1)): bgstep()
            for m in ("quad_perm:[1,0,3,2]", "quad_perm:[2,3,0,1]", "row_half_mirror"):
                e(f"v_add_f32_dpp v{S1}, v{S1}, v{S1} {m} row_mask:0xf bank_mask:0xf")
                e(f"v_add_f32_dpp v{S2}, v{S2}, v{S2} {m} row_mask:0xf bank_mask:0xf")
            e(f"v_mul_f32 v{S1}, {f32(1/576)}, v{S1}"); e(f"v_mul_f32 v{S2}, {f32(1/576)}, v{S2}")
            e(f"v_fma_f32 v{S2}, -v{S1}, v{S1}, v{S2}"); e(f"v_max_f32 v{S2}, 0, v{S2}")
            e(f"v_cvt_pk_bf16_f32 v{S1}, v{S1}, v{S2}")
            e(f"v_lshlrev_b32 v{MU}, 16, v{S1}"); e(f"v_and_b32 v{S2}, 0xffff0000, v{S1}")
            e(f"v_add_f32 v{S2}, {f32(1e-5)}, v{S2}"); e(f"v_cvt_pk_bf16_f32 v{S2}, v{S2}, v{S2}"); e(f"v_and_b32 v{S2}, 0xffff0000, v{S2}")
            e(f"v_sqrt_f32 v{S2}, v{S2}"); e(f"v_cvt_pk_bf16_f32 v{S2}, v{S2}, v{S2}"); e(f"v_and_b32 v{S2}, 0xffff0000, v{S2}")
            e(f"v_rcp_f32 v{RS}, v{S2}")
            if s.alpha: e(f"v_mul_f32 v{RS}, {f32(al)}, v{RS}")
            e(f"v_mul_f32 v{MU}, v{MU}, v{RS}"); e(f"v_sub_f32 v{MU}, 0, v{MU}")
            s.pstamp()
            jb = {0: s.jb0, 1: s.jb1, 2: s.jb2, 3: s.jit0}[a]
            if a < 3 and jb < 9:
                e(f"v_mov_b32 v{KEEP[a]}, v{MU}"); e(f"v_mov_b32 v{KEEP[a]+1}, v{RS}")
            for b in range(9):
                jit = (a == 3 and b >= s.jit0)
                if a < 3 and b >= jb: continue
                em = (lambda t_, b=b: F.add(t_, 0, f'ln{b}')) if jit else e
                if a == 3:
                    for a_ in range(3):
                        if b >= {0: s.jb0, 1: s.jb1, 2: s.jb2}[a_]:
                            x = xreg(a_, b); t = L + ((b + a_ + 1) & 1) * 8
                            for q in range(4):
                                F.add(f"v_lshlrev_b32 v{t+2*q}, 16, v{x+q}", 0, f'ln{b}'); F.add(f"v_and_b32 v{t+2*q+1}, 0xffff0000, v{x+q}", 0, f'ln{b}')
                            for q in range(8): F.add(f"v_fma_f32 v{t+q}, v{t+q}, v{KEEP[a_]+1}, v{KEEP[a_]}", 0, f'ln{b}')
                            for q in range(4): F.add(f"v_cvt_pk_bf16_f32 v{x+q}, v{t+2*q}, v{t+2*q+1}", 0, f'ln{b}')
                x = xreg(a, b); t = L + (b & 1) * 8
                for q in range(4):
                    em(f"v_lshlrev_b32 v{t+2*q}, 16, v{x+q}"); em(f"v_and_b32 v{t+2*q+1}, 0xffff0000, v{x+q}")
                for q in range(4):
                    if not jit: em(f"v_pk_fma_f32 {R(t+2*q,2)}, {R(t+2*q,2)}, {R(RS,2)}, {R(MU,2)} op_sel_hi:[1,0,0]")
                    else:
                        for h in range(2): em(f"v_fma_f32 v{t+2*q+h}, v{t+2*q+h}, v{RS}, v{MU}")
                for q in range(4):
                    em(f"v_cvt_pk_bf16_f32 v{x+q}, v{t+2*q}, v{t+2*q+1}")
                if a < 3 and b < 5: e(wr_txt(a, b))
                if a == 2 and b < 5:
                    for t2 in (2 * b, 2 * b + 1): e(rd_txt(0, t2))
                if a == 3:
                    g = f'ln{b}'
                    if b < 5:
                        em(wr_txt(3, b))
                        if jit: F.add(Mark(f'xw{b}'), 0, g)
                        else: e(Mark(f'xw{b}'))
                        for t2 in (2 * b, 2 * b + 1): em(rd_txt(1, t2))
                    else:
                        for a_ in range(4): F.add(wr_txt(a_, b), 0, g, barrier_dep=f'xr{b-5}')
                        F.add(Mark(f'xw{b}'), 0, g)
                        for t2 in (2 * b, 2 * b + 1):
                            for lt in range(2): F.add(rd_txt(lt, t2), 0, g)
                    own = [it for it in F.items if it['group'] == g and it['ins'].kind == 'dsr']
                    for t2 in (2 * b, 2 * b + 1):
                        for lt in (2, 3): F.add(rd_txt(lt, t2), 0, f'lp{b}', barrier_dep=f'xw{b}')
                    F.add(Mark(f'xr{b}'), 0, f'lp{b}', after=own if b < 8 else [it for it in F.items if it['ins'].kind == 'dsr'])
                if not jit and s.wa0 < 0 and (b >= s.xn0 or not bx): bgstep()
                if not jit and s.wa0 >= 0:
                    if bx and bx[0].kind == 'vm' and bx[0].op == 'buffer_load_dword': pop(bx)
                    elif a >= s.wa0 and b % s.wrate == 0: pop(bw)
            s.pstamp()
        while bw and not all(x.tag not in [f"st{k}" for k in range(s.npre)] for x in bw): pop(bw)
        s.dq0 = bw
        s.flag(0, PQ, None, direct=True); e(Mark('init', vm='fl0'))
        e(f"s_lshr_b32 s{sROT}, s{sROT}, 1"); e(f"s_lshl_b32 s{sROT}, s{sROT}, 10")
        s.stamp()
        def hooks(name):
            if name == f"stage{s.atts}":
                n0 = len(s.F.items); s.attn_finish()
                s.F.items[:] = s.F.items[n0:] + s.F.items[:n0]
            if name == "stage5":
                for k in range(2): s.F.add(f"global_load_dwordx4 {R(WIN+4*k,4)}, v3, s[{sTB}:{sTB+1}] offset:{k*1024}", 0, 'tb')
            if name in ("stage0", "stage2", "stage5", "stage9"): s.pstamp()
            if name == f"stage{s.r0st}": s.gates.add('ldok')
            if name == "stage8":
                e(f"s_and_b32 s{sSIG}, s{sMT}, 7"); e(f"s_cmp_eq_u32 s{sW}, 0"); e(f"s_cselect_b32 s{sSIG}, s{sSIG}, 0xff")
            if name.startswith("stage") and 9 <= int(name[5:]) < 17:
                k = int(name[5:]) - 9
                assert 'init' in s.gates
                e(f"s_cmp_eq_u32 s{sSIG}, {k}"); e(f"s_cbranch_scc1 L_sig{k}"); e(f"L_sigb{k}:")
                s.tail += [f"L_sig{k}:", "s_mov_b64 exec, 1", f"global_atomic_inc v{vLane}, v{vHW[0]}, s[20:21] sc1", "s_mov_b64 exec, -1", f"s_branch L_sigb{k}"]
            if name.startswith("stage"): return
            if name == "ph0_done":
                s.stamp()
                s.ph0_epilogue()
                F = s.F
                F.add(f"v_lshlrev_b32 v{WIN+23}, 4, v{vLane}", 0, 'tb')
                for k in range(2):
                    F.add(f"global_load_dwordx4 {R(TB3+4*k,4)}, v{WIN+23}, s[{sTB}:{sTB+1}] offset:{2048+k*1024}", 0, 'tb')
                F.add(f"s_lshl_b32 s{sT[5]}, s{sW}, 10", 0, 'tb'); F.add(f"s_add_u32 s{sT[5]}, s{sT[5]}, 4096", 0, 'tb')
                F.add(f"v_add_u32 v{WIN+23}, s{sT[5]}, v{WIN+23}", 0, 'tb')
                F.add(f"global_load_dwordx4 {R(TB3+8,4)}, v{WIN+23}, s[{sTB}:{sTB+1}]", 0, 'tb')
            elif name.startswith("blk"):
                b = int(name[3])
                s.stamp(name)
                s.gelu(b)
                if b == 3:
                    e(f"s_and_b32 s{sH0}, s{sW}, 1"); e(f"s_lshl_b32 s{sH1}, s{sH0}, 13"); e(f"s_lshl_b32 s{sH0}, s{sH0}, 3")
                    for k in range(2):
                        e(f"v_subrev_u32 v{vHR[k]}, s{sH1}, v{vHW[k]}"); e(f"v_add_u32 v{vHR[2+k]}, 65536, v{vHR[k]}"); e(f"v_add_u32 v{vHH[k]}, s{sH0}, v{vHR[2+k]}")
            elif name.startswith("hs") or name == "half_done":
                k = int(name[2]) if name.startswith("hs") else 4
                if k == 4:
                    s.stamp()
                    e(f"v_bfe_u32 v{vK16}, v{vLane}, 2, 2"); e(f"v_mul_u32_u24 v{vK16}, 1152, v{vK16}"); e(f"v_and_b32 v{vTRh}, 3, v{vLane}"); e(f"v_lshl_add_u32 v{vK16}, v{vTRh}, 3, v{vK16}")
                    e(f"s_and_b32 s{sH0}, s{sW}, 1"); e(f"s_lshl_b32 s{sH0}, s{sH0}, 6"); e(f"s_add_u32 s{sH0}, s{sH0}, {W10}"); e(f"v_add_u32 v{vK16}, s{sH0}, v{vK16}")
                    s.gelu(4)
                n0 = len(s.F.items)
                for ks in {0: [0, 1, 2, 3], 1: [4, 5, 6, 7], 2: [9, 10], 3: [], 4: [8]}[k]:
                    gate = f"h{ks//2}" if ks <= 8 else 'o'
                    for lt in range(4):
                        b = vHR[(lt >> 1) + (2 if ks >= 8 else 0)]
                        o = (ks % 8) * 8192 + (lt & 1) * 1024
                        s.F.add(f"ds_read_b128 {XN(lt,ks)}, v{b} offset:{o}" if ks < 10 else f"ds_read_b64 {XN(lt,ks,2)}, v{b} offset:{o}", 0, f'hr{ks}', barrier_dep=gate)
                if k == 4: s.F.add(Mark('hfree'), 0, 'hf', after=[it for it in s.F.items if it['group'].startswith('hr')])
                s.F.items[:] = s.F.items[n0:] + s.F.items[:n0]
            elif name.startswith("nb"):
                n = int(name[2])
                if n == s.NO - 1: s.stamp()
                if s.pst == 99 and n >= 1: s.stamp('p', True, True)
                n0 = len(s.F.items); s.p2_epilogue(n)
                ne = sum(1 for it in s.F.items[:n0] if it['group'].startswith('ep'))
                old = s.F.items[:n0]
                s.F.items[:] = [it for it in old if it['group'].startswith('ep')] + s.F.items[n0:] + [it for it in old if not it['group'].startswith('ep')]
                if n == 2:
                    F = s.F; g = 'rs'
                    for x in [f"s_mov_b32 s{sOUT}, s18", f"s_mov_b32 s{sOUT+1}, s19", f"s_mov_b32 s{sOUT+2}, {2048*1152}", f"s_mov_b32 s{sOUT+3}, 0x20000",
                              f"s_mul_i32 s{sRB}, s{sMT}, {PSTRIDE_M}", f"s_lshl_b32 s{sXB}, s{sJ}, 10", f"s_add_u32 s{sRB}, s{sRB}, s{sXB}", f"s_add_u32 s{sRB}, s{sRB}, {PBASE}",
                              f"s_and_b32 s{sXB}, s{sJ}, 7", f"s_lshl_b32 s{sFB}, s{sMT}, 3", f"s_add_u32 s{sXB}, s{sXB}, s{sFB}", f"s_mul_i32 s{sXB}, s{sXB}, {16*1152}",
                              f"s_lshr_b32 s{sFB}, s{sJ}, 3", f"s_lshl_b32 s57, s{sFB}, 6", f"s_add_u32 s{sXB}, s{sXB}, s57",
                              f"s_bfe_u32 s57, s{sJ}, 0x10002", f"s_lshl_b32 s57, s57, 1", f"s_add_u32 s{sFB}, s{sFB}, s57",
                              f"s_lshl_b32 s57, s{sMT}, 6", f"s_add_u32 s{sFB}, s{sFB}, s57", f"s_lshl_b32 s{sFB}, s{sFB}, 7", f"s_add_u32 s{sFB}, s{sFB}, {FLAGB}",
                              f"v_and_b32 v{vFP}, 15, v{vLane}", f"v_lshlrev_b32 v{vFP}, 9, v{vFP}"] + s.rr_addr(2) + s.rr_addr(1): F.add(x, 0, g)
                if n in (2, 3, 6):
                    b0 = {2: 0, 3: 2, 6: 4}[n]
                    s.rr_poll(b0)
                    if b0 < 2 * s.nov: s.rr_body(b0)
            if not s.overlap: s.flush()
        s.run_backbone(hooks)
        s.flush(lambda it: it['group'].startswith('ep'))
        p99 = lambda: s.stamp('p', True, True) if s.pst == 99 else None
        s.stamp()
        S0 = s.S
        s.S = []; s.flush(lambda it: it['group'] in ('rr0', 'rr2', 'rr4')); LQ = s.S
        s.S = []; s.flush(); FQ = s.S
        s.S = S0
        toI = lambda l: [I(x) if isinstance(x, str) else x for x in l]
        for b0 in range(2 * s.nov, 10, 2):
            r = s.rr(b0, True)
            if b0 >= 6:
                ld, chk = s.poll(r['name'], r['load'], r['vf'], r['need'], [], None, direct=True, sleep=2)
                k = len(LQ); n = 0
                while k > 0 and n < s.pahead:
                    k -= 1; n += (LQ[k].kind == 'vm')
                LQ.insert(k, ld); ld.tag = 'poll'
                LQ += chk.ins
            LQ += toI(r['pre'] + r['loads'])
            FQ += toI(r['fin'])
        e(Wait(vm=['p6', 'p7'])); s.flag(9, vT[0], None, direct=True)
        issued = set(); order = []
        allld = set()
        for x in LQ:
            if x.kind == 'vm': allld |= x.wr
        nld = 0; flagged = False
        def fin_ready(x, win):
            t = (x.rd | x.wr) & allld
            if not t: return True
            if not t <= issued: return False
            last = max(k for k, w in enumerate(order) if w & t)
            return last < len(order) - win
        while LQ:
            x = LQ[0]
            if not flagged and (nld >= s.kpre or x.tag == 'poll'):
                n = 0
                while FQ and n < s.drainwork and not ((FQ[0].rd | FQ[0].wr) & allld) and FQ[0].kind != 'vm':
                    s.S.append(FQ.pop(0)); n += 1
                e(Wait(vm='p8')); s.flag(10, vT[1], None, direct=True); p99(); flagged = True
            while any((y.rd | y.wr) & (x.wr - SCC) and not ((y.rd | y.wr) & (allld - issued) & x.wr) for y in FQ if fin_old(y, issued, allld)):
                s.S.append(FQ.pop(0))
            LQ.pop(0); s.S.append(x)
            if x.kind == 'label' and x.text.startswith('L_bk_r') and x.text[6] in '68': p99()
            if x.kind == 'vm':
                nld += 1; issued |= x.wr; order.append(set(x.wr))
                if flagged:
                    while FQ and fin_ready(FQ[0], s.win): s.S.append(FQ.pop(0))
        s.stamp()
        s.S += FQ
        if s.stamps: e(Wait(allvm=True))
        p99(); e(Wait(alllg=True))
        s.stamp()
        if s.stamps and s.dbgwg >= 0:
            e(f"s_lshl_b32 s3, s2, 2"); e(f"s_add_u32 s3, s3, s{sW}"); e(f"s_cmp_lg_u32 s3, {s.dbgwg*4}"); e("s_cbranch_scc1 L_endA")
            e("v_mov_b32 v1, 0")
            for k in range(1, s.nst):
                e(f"s_sub_u32 s3, s{STP[k]}, s{STP[k-1]}"); e("v_mov_b32 v2, s3"); e(f"global_store_dword v1, v2, s[20:21] offset:{4*k}"); e("s_nop 1")
            e("s_waitcnt vmcnt(0)")
        elif s.stamps:
            e(f"s_add_u32 s22, s22, {STAMP}"); e("s_addc_u32 s23, s23, 0"); e("s_lshl_b32 s3, s2, 7"); e(f"s_lshl_b32 s16, s{sW}, 15"); e("s_add_u32 s3, s3, s16"); e("v_mov_b32 v1, s3")
            for k in range(s.nst):
                e(f"v_mov_b32 v2, s{STP[k]}"); e(f"v_mov_b32 v3, s{STP[k]+1}"); e(f"global_store_dwordx2 v1, v[2:3], s[22:23] offset:{8*k}"); e("s_nop 1")
            e("s_waitcnt vmcnt(0)")
        e("L_endA:"); e("s_endpgm")

    def dumpH(s):
        e = s.e
        e(f"v_lshlrev_b32 v5, 4, v{vLane}"); e(f"s_mul_i32 s{sT[4]}, s{sW}, 22528"); e(f"v_add_u32 v5, s{sT[4]}, v5"); e(f"v_add_u32 v6, {HB}, v5")
        e(f"s_mul_i32 s{sT[4]}, s2, 90112"); e(f"s_add_u32 s{sT[4]}, s{sT[4]}, {64<<20}")
        e(f"s_mov_b32 s{sWS+2}, {128<<20}")
        for k in range(22):
            e(f"ds_read_b128 {R(ACC[0],4)}, v6 offset:{k*1024}")
            e(f"buffer_store_dwordx4 {R(ACC[0],4)}, v5, {srd(sWS)}, s{sT[4]} offen"); e(f"s_add_u32 s{sT[4]}, s{sT[4]}, 1024"); e("s_nop 4")
        e(f"s_mov_b32 s{sWS+2}, {WSREC}")

def kernelB(al, stamps):
    S = []; e = lambda x: S.append(I(x) if isinstance(x, str) else x)
    NWV = 9
    e("s_cmp_ge_u32 s2, 256"); e("s_cbranch_scc1 L_endB")
    if stamps: e("s_memrealtime s[44:45]")
    e("s_load_dwordx2 s[4:5], s[0:1], 0"); e("s_load_dwordx2 s[6:7], s[0:1], 56"); e("s_load_dwordx2 s[8:9], s[0:1], 72")
    e("v_lshrrev_b32 v1, 6, v0"); e("v_readfirstlane_b32 s3, v1"); e("v_and_b32 v0, 63, v0")
    e(f"s_mul_i32 s10, s2, {NWV}"); e("s_add_u32 s10, s10, s3")
    e("s_lshr_b32 s11, s2, 4")
    e("s_mul_i32 s12, s11, 144"); e("s_sub_u32 s12, s10, s12")
    e("s_and_b32 s13, s12, 7"); e("s_lshr_b32 s14, s12, 3")
    e("s_lshl_b32 s15, s10, 10"); e(f"s_add_u32 s15, s15, {PBASE}")
    e("v_lshlrev_b32 v2, 4, v0")
    e("s_lshl_b32 s16, s11, 3"); e("s_add_u32 s16, s16, s13"); e(f"s_mul_i32 s16, s16, {16*1152}"); e("s_lshl_b32 s17, s14, 6"); e("s_add_u32 s16, s16, s17")
    e("v_and_b32 v3, 15, v0"); e("v_mul_u32_u24 v3, 1152, v3"); e("v_lshrrev_b32 v4, 4, v0")
    e("v_lshl_add_u32 v5, v4, 3, v3")
    e("v_and_b32 v6, 1, v4"); e("v_lshrrev_b32 v4, 1, v4"); e("v_lshl_add_u32 v3, v6, 5, v3"); e("v_lshl_add_u32 v3, v4, 4, v3")
    e(Wait(alllg=True))
    e("s_mov_b32 s20, s8"); e("s_mov_b32 s21, s9"); e(f"s_mov_b32 s22, {WSREC}"); e("s_mov_b32 s23, 0x20000")
    e("s_mov_b32 s24, s4"); e("s_mov_b32 s25, s5"); e(f"s_mov_b32 s26, {2048*1152}"); e("s_mov_b32 s27, 0x20000")
    e("s_mov_b32 s28, s6"); e("s_mov_b32 s29, s7"); e(f"s_mov_b32 s30, {2048*1152}"); e("s_mov_b32 s31, 0x20000")
    for i in range(16):
        e(f"buffer_load_dwordx4 {R(24+4*i,4)}, v2, s[20:23], s15 offen")
        if i < 15: e(f"s_add_u32 s15, s15, {PSTRIDE_J}")
    e("buffer_load_dwordx2 v[20:21], v5, s[24:27], s16 offen"); e("buffer_load_dwordx2 v[22:23], v5, s[24:27], s16 offen offset:32")
    for i in range(16):
        for q in range(4):
            x = 24 + 4 * i + q
            if i == 0:
                e(f"v_lshlrev_b32 v{8+2*q}, 16, v{x}"); e(f"v_and_b32 v{9+2*q}, 0xffff0000, v{x}")
            else:
                t = 16 + 2 * (q & 1)
                e(f"v_lshlrev_b32 v{t}, 16, v{x}"); e(f"v_and_b32 v{t+1}, 0xffff0000, v{x}")
                e(f"v_pk_add_f32 {R(8+2*q,2)}, {R(8+2*q,2)}, {R(t,2)}")
    e(f"s_mov_b32 s18, {f32(1.0/(al*al))}")
    for q in range(4):
        e(f"v_lshlrev_b32 v16, 16, v{20+q}"); e(f"v_and_b32 v17, 0xffff0000, v{20+q}")
        e(f"v_fma_f32 v{8+2*q}, v{8+2*q}, s18, v16"); e(f"v_fma_f32 v{9+2*q}, v{9+2*q}, s18, v17")
        e(f"v_cvt_pk_bf16_f32 v{24+q}, v{8+2*q}, v{9+2*q}")
    e("v_permlane16_swap_b32 v24, v26"); e("v_permlane16_swap_b32 v25, v27")
    e("buffer_store_dwordx4 v[24:27], v3, s[28:31], s16 offen")
    if stamps:
        e("s_waitcnt vmcnt(0)"); e("s_memrealtime s[46:47]"); e("s_waitcnt lgkmcnt(0)")
        e("s_cmp_lg_u32 s3, 0"); e("s_cbranch_scc1 L_endB")
        e(f"s_add_u32 s8, s8, {STAMP+0x100000}"); e("s_addc_u32 s9, s9, 0"); e("s_lshl_b32 s17, s2, 4"); e("v_mov_b32 v1, s17")
        e("v_mov_b32 v4, s44"); e("v_mov_b32 v5, s45"); e("v_mov_b32 v6, s46"); e("v_mov_b32 v7, s47")
        e("global_store_dwordx4 v1, v[4:7], s[8:9]"); e("s_waitcnt vmcnt(0)")
    e("L_endB:"); e("s_endpgm")
    return S

def kd(name, nv, acc, ns):
    return f""".p2align 6
.amdhsa_kernel {name}
  .amdhsa_next_free_vgpr {nv}
  .amdhsa_next_free_sgpr {ns}
  .amdhsa_accum_offset {acc}
  .amdhsa_group_segment_fixed_size 0
  .amdhsa_kernarg_size 80
  .amdhsa_user_sgpr_count 2
  .amdhsa_user_sgpr_kernarg_segment_ptr 1
  .amdhsa_system_sgpr_workgroup_id_x 1
.end_amdhsa_kernel
"""

def generate(**kw):
    g = Gen(**kw); g.kernelA()
    ab = kw.get('abl', 0)
    if ab:
        S2 = []; seen_bb = False
        for x in g.S:
            t = getattr(x, 'text', '')
            if (ab & 1) and t.startswith('buffer_store') and x.tag != 'rec': continue
            if (ab & 2) and ' lds' in t and x.tag and int(x.tag[2:]) >= 13: continue
            if (ab & 4) and t == 's_barrier' and seen_bb: continue
            if (ab & 8) and t.startswith('buffer_store') and x.tag != 'rec': x = I(t.replace(' sc1', ''), x.tag)
            if (ab & 16) and '16x16x16' in t: continue
            if (ab & 32) and t.startswith('ds_read_b64_tr') and seen_bb: continue
            if (ab & 64) and x.kind in ('valu', 'trans', 'dsw') and seen_bb and 'readfirstlane' not in t and not t.startswith('v_mov') and not t.startswith('v_add_u32') and not t.startswith('v_min_u32') and not t.startswith('v_sub') and not t.startswith('v_lshl'): continue
            if 'global_atomic' in t: seen_bb = True
            S2.append(x)
        g.S = S2
    A, auto, nn = postpass(g.S, verbose=bool(kw.get('verbose')))
    nm = sum(1 for x in A if x.kind == 'mfma')
    print(f"kernelA: {len(A)} instrs, {nm} mfma, auto waits {auto}, nops {nn}, extra barriers {g.nextra}, late reads {g.late}, overflow {g.novf}, flushed {g.flushlog} nst {g.nst}", file=sys.stderr)
    o = [HDR.rstrip()]
    o.append(f"; @launch kernel={KN}_kernel grid=(256,1,1) block=(256,1,1) lds=163840" if g.aslist else "; @launch grid=(256,1,1) block=(256,1,1) lds=163840")
    o.append('.amdgcn_target "amdgcn-amd-amdhsa--gfx950"'); o.append(".text")
    o += [f".globl {KN}_kernel", ".p2align 8", f".type {KN}_kernel,@function", f"{KN}_kernel:"]
    o += [("    " + x.text if x.kind != 'label' else x.text) for x in A if x.text]
    o += [("    " + x if not x.endswith(":") else x) for x in g.tail]
    o += [".p2align 7", ".type L_tbl,@object", "L_tbl:"]
    for G in build_table():
        for l in G: o.append(".long " + ", ".join("0x%x" % v for v in l))
    o.append(f".size L_tbl, {NGRP*1024}")
    o.append("L_codeend:")
    o.append('.section .rodata,"a"')
    o.append(kd(KN + "_kernel", 512, 256, 102))
    return "\n".join(o) + "\n"

if __name__ == "__main__":
    import argparse
    ap = argparse.ArgumentParser()
    ap.add_argument("-o", default="k.s")
    ap.add_argument("--alpha", action="store_true"); ap.add_argument("--chain", type=int, default=1)
    ap.add_argument("--stamps", action="store_true"); ap.add_argument("--dump"); ap.add_argument("--nooverlap", action="store_true")
    ap.add_argument("-D", type=int, default=4)
    ap.add_argument("-k", action="append", default=[])
    a = ap.parse_args()
    open(a.o, "w").write(generate(alpha=a.alpha, chain=a.chain, stamps=a.stamps, dump=a.dump, overlap=not a.nooverlap, D=a.D, **{x.split('=')[0]: int(x.split('=')[1]) for x in a.k}))
```
